```python
import torch

def _softmax(x, axis=-1):
    return torch.softmax(x, dim=axis)
def _gelu(x):
    return torch.nn.functional.gelu(x, approximate="tanh")
def _silu(x):
    return torch.nn.functional.silu(x)
def _sigmoid(x):
    return torch.sigmoid(x)
def _layernorm(x, axis=-1, eps=1e-5):
    m = x.mean(dim=axis, keepdim=True)
    v = x.var(dim=axis, keepdim=True, unbiased=False)
    return (x - m) / torch.sqrt(v + eps)
def _scatter_add(tgt, idx, src, axis=0):
    return tgt.clone().index_add_(axis, idx, src)
def _segment_sum(src, seg, n):
    out = torch.zeros((n,) + src.shape[1:], dtype=src.dtype)
    return out.index_add_(0, seg, src)
def _pad(x, pw):
    flat = tuple(v for pair in reversed(pw) for v in pair)
    return torch.nn.functional.pad(x, flat)

kernel_name = 'standalone__deep_cross_pnn__recsys'

def setup_inputs():

    _w = (lambda a: (lambda t: t.to(torch.bfloat16) if t.is_floating_point() else t)(torch.as_tensor(a)))
    B, F, D, V = 16384, 100, 64, min(100000, 100000)
    H = 4 * D
    return {
        "idx": _w((lambda lo, hi, *s: torch.randint(lo, hi, s))(0, V, B, F).to(torch.int64)),
        "table": _w((lambda *s: torch.randn(*s, dtype=torch.bfloat16) * 1.6)(V, D) * (D ** -0.5)),
        "w_p": _w((lambda *s: torch.randn(*s, dtype=torch.bfloat16) * 0.05)(F * F) * ((F * F) ** -0.5)),
        "w1": _w((lambda *s: torch.randn(*s, dtype=torch.bfloat16) * 1.6)(F * D, H) * ((F * D) ** -0.5)),
        "b1": _w((lambda *s: torch.randn(*s, dtype=torch.bfloat16) * 12.8)(H) * 0.01),
        "w2": _w((lambda *s: torch.randn(*s, dtype=torch.bfloat16) * 0.05)(H) * (H ** -0.5)),
        "b2": _w((lambda *s: torch.randn(*s, dtype=torch.bfloat16) * 1.6)(1) * 0.01),
    }

def reference(idx, table, w_p, w1, b1, w2, b2):
    emb = table[idx]
    B = emb.shape[0]; F = emb.shape[1]; D = emb.shape[2]
    ip = torch.einsum('bid,bjd->bij', emb, emb)
    ip = ip.reshape(B, F * F)
    logit_p = ip @ w_p
    z = emb.reshape(B, F * D)
    h = _gelu(z @ w1 + b1)
    logit_d = h @ w2 + b2
    return logit_p + logit_d
```

```python
def vr(base, n=1):
    return [f"v{base + i}" for i in range(n)]


def sr(base, n=1):
    return [f"s{base + i}" for i in range(n)]


def V(base, n=1):
    return f"v{base}" if n == 1 else f"v[{base}:{base + n - 1}]"


def S(base, n=1):
    return f"s{base}" if n == 1 else f"s[{base}:{base + n - 1}]"


class Prog:
    def __init__(self):
        self.lines = []
        self.reset_state()

    def reset_state(self):
        self.slot = 0
        self.lastw = {}
        self.srcc = {}
        self.stdata = {}
        self.vm_issued = 0
        self.vm_done = 0
        self.lg_issued = 0
        self.lg_done = 0
        self.pend_vm = {}
        self.pend_lg = {}
        self.max_vm_out = 0

    def raw(self, text):
        self.lines.append(text)

    def comment(self, text):
        self.lines.append(f"    ; {text}")

    def label(self, name):
        self.lines.append(f"{name}:")

    def _put(self, text, width=1):
        self.lines.append("    " + text)
        self.slot += width

    def nop(self, n):
        while n > 0:
            k = min(n, 16)
            self._put(f"s_nop {k - 1}", k)
            n -= k

    def wait(self, vm=None, lg=None):
        parts = []
        if vm is not None and vm >= self.vm_done:
            n = self.vm_issued - vm - 1
            n = min(n, 63)
            parts.append(f"vmcnt({n})")
            self.vm_done = self.vm_issued - n
        if lg is not None and lg >= self.lg_done:
            n = self.lg_issued - lg - 1
            n = min(n, 15)
            parts.append(f"lgkmcnt({n})")
            self.lg_done = self.lg_issued - n
        if parts:
            self._put("s_waitcnt " + " ".join(parts))

    def wait_all(self, vm=True, lg=True):
        self.wait(vm=self.vm_issued - 1 if vm and self.vm_issued else None,
                  lg=self.lg_issued - 1 if lg and self.lg_issued else None)

    def wait_smem(self):
        self._put("s_waitcnt lgkmcnt(0)")
        self.lg_done = self.lg_issued

    def emit(self, text, kind, rd=(), wr=(), dpp=(), srcc=(), stdata=()):
        rd = list(rd)
        wr = list(wr)
        vm = lg = None
        for r in rd + wr:
            if r in self.pend_vm:
                t = self.pend_vm[r]
                vm = t if vm is None else max(vm, t)
            if r in self.pend_lg:
                t = self.pend_lg[r]
                lg = t if lg is None else max(lg, t)
        self.wait(vm=vm, lg=lg)
        for r in rd + wr:
            self.pend_vm.pop(r, None)
            self.pend_lg.pop(r, None)
        need_slot = 0

        def req(pslot, ws):
            nonlocal need_slot
            need_slot = max(need_slot, pslot + 1 + ws)

        isvalu = kind in ("valu", "trans", "dpp", "lane", "perm")
        ismfma = kind == "mfma"
        for r in rd:
            if r not in self.lastw:
                continue
            ps, pk, ex = self.lastw[r]
            pvalu = pk in ("valu", "trans", "dpp", "lane", "perm")
            if pvalu and r[0] == "v":
                if ismfma:
                    req(ps, 2)
                if r in dpp:
                    req(ps, 2)
                if kind == "perm":
                    req(ps, 2)
                if kind == "lane":
                    req(ps, 1)
                if pk == "trans":
                    req(ps, 1)
            if pvalu and r[0] != "v":
                if kind in ("vmem", "dma"):
                    req(ps, 5)
                elif kind == "lane":
                    req(ps, 4)
                elif isvalu:
                    req(ps, 2)
                elif kind == "salu":
                    req(ps, 1)
            if pk == "mfma":
                passes, drange = ex
                big = {4: 8, 8: 12}[passes]
                ovl = {4: 6, 8: 10}[passes]
                if ismfma and r in srcc and r not in [x for x in rd if x not in srcc]:
                    if tuple(srcc) == drange:
                        pass
                    else:
                        req(ps, ovl)
                else:
                    req(ps, big)
            if r == "m0" and pk == "salu" and kind == "dma":
                req(ps, 1)
        for w in wr:
            if w in self.lastw:
                ps, pk, ex = self.lastw[w]
                if pk == "mfma" and not ismfma:
                    req(ps, {4: 8, 8: 12}[ex[0]])
            if isvalu and w in self.srcc:
                ps, passes = self.srcc[w]
                req(ps, {4: 3, 8: 7}[passes])
            if w in self.stdata:
                req(self.stdata[w], 2)
        if need_slot > self.slot:
            self.nop(need_slot - self.slot)
        me = self.slot
        self._put(text)
        return me

    def _mark(self, me, regs, kind, extra=None):
        for r in regs:
            self.lastw[r] = (me, kind, extra)

    def salu(self, text, rd=(), wr=()):
        me = self.emit(text, "salu", rd, wr)
        self._mark(me, wr, "salu")

    def valu(self, text, rd=(), wr=(), kind="valu", dpp=()):
        me = self.emit(text, kind, rd, wr, dpp=dpp)
        self._mark(me, wr, kind)

    def mfma16(self, d, a, b, c=None):
        D = vr(d, 4)
        rd = vr(a, 4) + vr(b, 4)
        srcc = ()
        if c is not None:
            srcc = vr(c, 4)
            rd += srcc
        ctext = "0" if c is None else V(c, 4)
        me = self.emit(f"v_mfma_f32_16x16x32_bf16 {V(d, 4)}, {V(a, 4)}, {V(b, 4)}, {ctext}",
                       "mfma", rd, D, srcc=srcc)
        self._mark(me, D, "mfma", (4, tuple(D)))
        for r in srcc:
            self.srcc[r] = (me, 4)

    def mfma32(self, d, a, b, c=None):
        D = vr(d, 16)
        rd = vr(a, 4) + vr(b, 4)
        srcc = ()
        if c is not None:
            srcc = vr(c, 16)
            rd += srcc
        ctext = "0" if c is None else V(c, 16)
        me = self.emit(f"v_mfma_f32_32x32x16_bf16 {V(d, 16)}, {V(a, 4)}, {V(b, 4)}, {ctext}",
                       "mfma", rd, D, srcc=srcc)
        self._mark(me, D, "mfma", (8, tuple(D)))
        for r in srcc:
            self.srcc[r] = (me, 8)

    def vmem(self, text, rd=(), wr=(), kind="vmem", stdata=()):
        me = self.emit(text, kind, rd, wr)
        tok = self.vm_issued
        self.vm_issued += 1
        self.max_vm_out = max(self.max_vm_out, self.vm_issued - self.vm_done)
        for r in wr:
            self.pend_vm[r] = tok
            self.lastw.pop(r, None)
        for r in stdata:
            self.stdata[r] = me
        return tok

    def ds(self, text, rd=(), wr=()):
        self.emit(text, "ds", rd, wr)
        tok = self.lg_issued
        self.lg_issued += 1
        for r in wr:
            self.pend_lg[r] = tok
            self.lastw.pop(r, None)
        return tok

    def barrier(self):
        self._put("s_barrier")

    def text(self):
        return "\n".join(self.lines) + "\n"
```

```python
import math
import struct
import sys

from asmlib import Prog, V, S, vr, sr

NAME = "standalone__deep_cross_pnn__recsys"
B, F, D, VOC, H = 16384, 100, 64, 100000, 256

NE, NW = 5, 3
ESLOT = [0, 16384, 32768, 49152, 65536]
WBASE = 81920
WSLOT = [98304, 114688, 81920]
STG = 65536
WT = 131072
LDS_BYTES = 163840

TILES = [(i, j) for i in range(7) for j in range(i, 7)]
TIDX = {t: n for n, t in enumerate(TILES)}


def f32bits(x):
    return struct.unpack("<I", struct.pack("<f", x))[0]


class P:
    it0 = 5
    it1 = 102
    lead = 5
    wmax = 0
    align = 4
    wdma_pos = (1, 5, 9, 13)
    prio_g = 0
    prio_r = 2
    do_gram = True
    do_gemm = True
    do_edma = True
    do_wdma = True
    do_gload = True


S_IDX, S_TAB, S_WP, S_W1, S_B1, S_W2, S_B2, S_OUT, S_DBG, S_WS = 4, 6, 8, 10, 12, 14, 16, 18, 20, 22
S_WAVE = 3
S_PAIR = 24
S_HN = 25
S_SB = 26
S_T0, S_T1, S_T2, S_T3 = 27, 28, 29, 30
S_W4K = 31
SRD_A = 32
SRD_B = 36
S_C3200 = 40
S_MJ = 44
S_MI = 46
S_SOFF = 48
S_LP = 52


def srd(p, d, base, nbytes):
    p.salu(f"s_mov_b32 s{d}, s{base}", sr(base), sr(d))
    p.salu(f"s_mov_b32 s{d + 1}, s{base + 1}", sr(base + 1), sr(d + 1))
    p.salu(f"s_mov_b32 s{d + 2}, {nbytes}", [], sr(d + 2))
    p.salu(f"s_mov_b32 s{d + 3}, 0x00020000", [], sr(d + 3))


def common_prologue(p):
    p.raw("    s_cmp_ge_u32 s2, 256")
    p.raw("    s_cbranch_scc1 L_end")
    p.raw("    s_load_dwordx16 s[4:19], s[0:1], 0")
    p.raw("    s_load_dwordx4 s[20:23], s[0:1], 64")
    p.valu("v_lshrrev_b32 v1, 6, v0", ["v0"], ["v1"])
    p.valu("v_and_b32 v0, 63, v0", ["v0"], ["v0"])
    p.valu(f"v_readfirstlane_b32 s{S_WAVE}, v1", ["v1"], sr(S_WAVE), kind="lane")
    p.salu(f"s_lshr_b32 s{S_PAIR}, s2, 4", [], sr(S_PAIR))
    p.salu(f"s_lshl_b32 s{S_PAIR}, s{S_PAIR}, 3", sr(S_PAIR), sr(S_PAIR))
    p.salu(f"s_and_b32 s{S_T0}, s2, 7", [], sr(S_T0))
    p.salu(f"s_add_u32 s{S_PAIR}, s{S_PAIR}, s{S_T0}", sr(S_PAIR) + sr(S_T0), sr(S_PAIR))
    p.salu(f"s_lshr_b32 s{S_HN}, s2, 3", [], sr(S_HN))
    p.salu(f"s_and_b32 s{S_HN}, s{S_HN}, 1", sr(S_HN), sr(S_HN))
    p.salu(f"s_lshl_b32 s{S_SB}, s{S_PAIR}, 7", sr(S_PAIR), sr(S_SB))
    p.salu(f"s_and_b32 s{S_T0}, s{S_WAVE}, 3", sr(S_WAVE), sr(S_T0))
    p.salu(f"s_lshl_b32 s{S_W4K}, s{S_T0}, 12", sr(S_T0), sr(S_W4K))
    p.salu(f"s_cmp_ge_u32 s{S_WAVE}, 4", sr(S_WAVE), [])
    p.salu(f"s_mov_b32 s{S_WAVE}, s{S_T0}", sr(S_T0), sr(S_WAVE))
    p.wait_smem()
    p.raw("    s_cbranch_scc1 L_rwave")


G_WOFF = 2
G_EA = 6
G_WA = 10
G_M, G_G = 12, 13
G_T = 14
G_ACC = 64
G_EF = 128
G_WF = 192
G_B1 = 208
G_W2 = 216
G_C1, G_C2 = 224, 225


def acc(mb, nb):
    return G_ACC + (mb * 2 + nb) * 4


def gwave(p):
    p.reset_state()
    if P.prio_g:
        p.salu(f"s_setprio {P.prio_g}")
    m, g = G_M, G_G
    t0, t1, t2, t3 = G_T, G_T + 1, G_T + 2, G_T + 3
    p.valu(f"v_and_b32 v{m}, 15, v0", ["v0"], vr(m))
    p.valu(f"v_lshrrev_b32 v{g}, 4, v0", ["v0"], vr(g))
    srd(p, SRD_A, S_W1, F * D * H * 2)
    srd(p, SRD_B, S_WP, F * F * 2)
    p.salu(f"s_lshl_b32 s{S_T0}, s{S_WAVE}, 13", sr(S_WAVE), sr(S_T0))
    p.salu(f"s_lshl_b32 s{S_T1}, s{S_HN}, 8", sr(S_HN), sr(S_T1))
    p.salu(f"s_add_u32 s{S_T0}, s{S_T0}, s{S_T1}", sr(S_T0) + sr(S_T1), sr(S_T0))
    p.valu(f"v_lshl_add_u32 v{t0}, v{g}, 9, s{S_T0}", vr(g) + sr(S_T0), vr(t0))
    p.valu(f"v_lshlrev_b32 v{t1}, 1, v{g}", vr(g), vr(t1))
    p.valu(f"v_xor_b32 v{t1}, v{t1}, v{m}", vr(t1) + vr(m), vr(t1))
    p.valu(f"v_xor_b32 v{t2}, 8, v{t1}", vr(t1), vr(t2))
    for i in range(4):
        src = t1 if i < 2 else t2
        p.valu(f"v_lshl_add_u32 v{G_WOFF + i}, v{src}, 4, v{t0}", vr(src) + vr(t0), vr(G_WOFF + i))
        if i:
            p.valu(f"v_add_u32 v{G_WOFF + i}, {1024 * i}, v{G_WOFF + i}", vr(G_WOFF + i), vr(G_WOFF + i))

    wtok = {}

    def wdma_setup(f):
        p.salu(f"s_add_u32 m0, s{S_W4K}, {WSLOT[f % NW]}", sr(S_W4K), ["m0"])
        p.salu(f"s_mov_b32 s{S_SOFF}, {f * 32768}", [], sr(S_SOFF))

    def wdma(f, i):
        if not P.do_wdma:
            return
        off = f" offset:{1024 * i}" if i else ""
        wtok[f] = p.vmem(f"buffer_load_dwordx4 v{G_WOFF + i}, {S(SRD_A, 4)}, s{S_SOFF} offen{off} lds",
                         vr(G_WOFF + i) + ["m0"] + sr(S_SOFF), [], kind="dma")

    p.salu(f"s_mul_i32 s{S_T0}, s{S_WAVE}, 5120", sr(S_WAVE), sr(S_T0))
    p.valu(f"v_lshl_add_u32 v{t3}, v0, 4, s{S_T0}", ["v0"] + sr(S_T0), vr(t3))
    p.salu(f"s_add_u32 m0, s{S_T0}, {STG}", sr(S_T0), ["m0"])
    for q in range(4):
        off = f" offset:{1024 * q}" if q else ""
        p.vmem(f"buffer_load_dwordx4 v{t3}, {S(SRD_B, 4)}, 0 offen{off} lds", vr(t3) + ["m0"], [], kind="dma")
    p.salu(f"s_add_u32 m0, s{S_T0}, {STG + 4096}", sr(S_T0), ["m0"])
    p.salu(f"s_mov_b32 s{S_SOFF}, 4096", [], sr(S_SOFF))
    stg_tok = p.vmem(f"buffer_load_dwordx4 v{t3}, {S(SRD_B, 4)}, s{S_SOFF} offen lds",
                     vr(t3) + ["m0"] + sr(S_SOFF), [], kind="dma")
    for f in range(2):
        wdma_setup(f)
        for i in range(4):
            wdma(f, i)
    p.salu(f"s_lshl_b32 s{S_T0}, s{S_WAVE}, 6", sr(S_WAVE), sr(S_T0))
    p.salu(f"s_add_u32 s{S_T0}, s{S_T0}, s{S_T1}", sr(S_T0) + sr(S_T1), sr(S_T0))
    p.valu(f"v_lshl_add_u32 v{t0}, v{g}, 3, s{S_T0}", vr(g) + sr(S_T0), vr(t0))
    BT = 32
    for k, base in enumerate((S_B1, S_W2)):
        srd(p, SRD_B, base, H * 2)
        for nb in range(2):
            d = BT + 4 * k + 2 * nb
            p.vmem(f"buffer_load_dwordx2 {V(d, 2)}, v{t0}, {S(SRD_B, 4)}, 0 offen offset:{32 * nb}",
                   vr(t0), vr(d, 2))
    p.valu(f"v_lshrrev_b32 v{t1}, 1, v{m}", vr(m), vr(t1))
    p.valu(f"v_xor_b32 v{t1}, v{t1}, v{g}", vr(t1) + vr(g), vr(t1))
    p.valu(f"v_lshlrev_b32 v{t2}, 7, v{m}", vr(m), vr(t2))
    p.valu(f"v_lshl_add_u32 v{G_EA}, v{t1}, 4, v{t2}", vr(t1) + vr(t2), vr(G_EA))
    p.valu(f"v_xor_b32 v{G_EA + 1}, 64, v{G_EA}", vr(G_EA), vr(G_EA + 1))
    p.valu(f"v_add_u32 v{G_EA + 2}, 0x10000, v{G_EA}", vr(G_EA), vr(G_EA + 2))
    p.valu(f"v_add_u32 v{G_EA + 3}, 0x10000, v{G_EA + 1}", vr(G_EA + 1), vr(G_EA + 3))
    r_, c4, X = t0, t1, t2
    p.valu(f"v_lshrrev_b32 v{r_}, 2, v{m}", vr(m), vr(r_))
    p.valu(f"v_and_b32 v{c4}, 3, v{m}", vr(m), vr(c4))
    p.valu(f"v_and_b32 v{X}, 1, v{g}", vr(g), vr(X))
    p.valu(f"v_lshl_or_b32 v{X}, v{X}, 2, v{r_}", vr(X) + vr(r_), vr(X))
    p.valu(f"v_lshlrev_b32 v{X}, 1, v{X}", vr(X), vr(X))
    p.valu(f"v_lshrrev_b32 v{t3}, 1, v{c4}", vr(c4), vr(t3))
    p.salu(f"s_lshl_b32 s{S_T0}, s{S_WAVE}, 2", sr(S_WAVE), sr(S_T0))
    p.valu(f"v_add_u32 v{t3}, s{S_T0}, v{t3}", vr(t3) + sr(S_T0), vr(t3))
    p.valu(f"v_xor_b32 v{t3}, v{t3}, v{X}", vr(t3) + vr(X), vr(t3))
    p.valu(f"v_lshl_add_u32 v{r_}, v{g}, 3, v{r_}", vr(g) + vr(r_), vr(r_))
    p.valu(f"v_lshlrev_b32 v{r_}, 8, v{r_}", vr(r_), vr(r_))
    p.valu(f"v_lshl_add_u32 v{r_}, v{t3}, 4, v{r_}", vr(t3) + vr(r_), vr(r_))
    p.valu(f"v_and_b32 v{c4}, 1, v{c4}", vr(c4), vr(c4))
    p.valu(f"v_lshl_add_u32 v{r_}, v{c4}, 3, v{r_}", vr(c4) + vr(r_), vr(r_))
    p.valu(f"v_add_u32 v{G_WA}, {WBASE}, v{r_}", vr(r_), vr(G_WA))
    p.valu(f"v_xor_b32 v{G_WA + 1}, 32, v{G_WA}", vr(G_WA), vr(G_WA + 1))
    a1, a2, aw = G_T + 4, G_T + 5, G_T + 6
    p.valu(f"v_lshlrev_b32 v{t0}, 2, v{g}", vr(g), vr(t0))
    p.valu(f"v_add_u32 v{t0}, s{S_WAVE}, v{t0}", vr(t0) + sr(S_WAVE), vr(t0))
    p.valu(f"v_mul_u32_u24 v{t1}, 200, v{t0}", vr(t0), vr(t1))
    p.valu(f"v_lshl_add_u32 v{a1}, v{m}, 1, v{t1}", vr(m) + vr(t1), vr(a1))
    p.valu(f"v_add_u32 v{a1}, {STG}, v{a1}", vr(a1), vr(a1))
    p.valu(f"v_mul_u32_u24 v{t1}, 200, v{m}", vr(m), vr(t1))
    p.valu(f"v_lshl_add_u32 v{a2}, v{t0}, 1, v{t1}", vr(t0) + vr(t1), vr(a2))
    p.valu(f"v_add_u32 v{a2}, {STG}, v{a2}", vr(a2), vr(a2))
    p.salu(f"s_lshl_b32 s{S_T0}, s{S_WAVE}, 2", sr(S_WAVE), sr(S_T0))
    p.salu(f"s_add_u32 s{S_T0}, s{S_T0}, {WT}", sr(S_T0), sr(S_T0))
    p.valu(f"v_lshl_add_u32 v{aw}, v0, 4, s{S_T0}", ["v0"] + sr(S_T0), vr(aw))
    p.valu(f"v_cmp_gt_u32 {S(S_MJ, 2)}, 4, v{m}", vr(m), sr(S_MJ, 2))
    p.valu(f"v_cmp_eq_u32 {S(S_MI, 2)}, 0, v{g}", vr(g), sr(S_MI, 2))
    for i in range(64):
        p.valu(f"v_mov_b32 v{G_ACC + i}, 0", [], vr(G_ACC + i))
    c1 = -2.0 * math.log2(math.e) * math.sqrt(2.0 / math.pi)
    c2 = c1 * 0.044715
    p.valu(f"v_mov_b32 v{G_C2}, 0x{f32bits(c2):08x}", [], vr(G_C2))
    p.wait(vm=stg_tok)
    p.barrier()
    for n, (I, J) in enumerate(TILES):
        p.ds(f"ds_read_u16 v{G_EF + 2 * n}, v{a1} offset:{3200 * I + 32 * J}", vr(a1), vr(G_EF + 2 * n))
        if I != J:
            p.ds(f"ds_read_u16 v{G_EF + 2 * n + 1}, v{a2} offset:{3200 * J + 32 * I}", vr(a2), vr(G_EF + 2 * n + 1))
    for n, (I, J) in enumerate(TILES):
        x, y = G_EF + 2 * n, G_EF + 2 * n + 1
        p.valu(f"v_lshlrev_b32 v{x}, 16, v{x}", vr(x), vr(x))
        if I != J:
            p.valu(f"v_lshlrev_b32 v{y}, 16, v{y}", vr(y), vr(y))
            p.valu(f"v_add_f32 v{x}, v{x}, v{y}", vr(x) + vr(y), vr(x))
        if J == 6:
            p.valu(f"v_cndmask_b32 v{x}, 0, v{x}, {S(S_MJ, 2)}", vr(x) + sr(S_MJ, 2), vr(x))
        if I == 6:
            p.valu(f"v_cndmask_b32 v{x}, 0, v{x}, {S(S_MI, 2)}", vr(x) + sr(S_MI, 2), vr(x))
        p.ds(f"ds_write_b32 v{aw}, v{x} offset:{1024 * n}", vr(aw) + vr(x), [])
    for k, dst in enumerate((G_B1, G_W2)):
        for q in range(4):
            s = BT + 4 * k + q
            p.valu(f"v_lshlrev_b32 v{dst + 2 * q}, 16, v{s}", vr(s), vr(dst + 2 * q))
            p.valu(f"v_and_b32 v{dst + 2 * q + 1}, 0xffff0000, v{s}", vr(s), vr(dst + 2 * q + 1))
    srd(p, SRD_B, S_WS, 9 * 65536)

    def wf(h, nb):
        return G_WF + (h * 2 + nb) * 4

    def rd_w(f, h, nb, q):
        d = wf(h, nb) + 2 * q
        off = WSLOT[f % NW] - WBASE + 8192 * h + 1024 * q
        p.ds(f"ds_read_b64_tr_b16 {V(d, 2)}, v{G_WA + nb} offset:{off}", vr(G_WA + nb), vr(d, 2))

    def rd_e(f, j):
        h, mb = j >> 3, j & 7
        base = ESLOT[f % NE]
        a = G_EA + h
        if base >= 65536:
            base -= 65536
            a += 2
        d = G_EF + 4 * j
        p.ds(f"ds_read_b128 {V(d, 4)}, v{a} offset:{base + 2048 * mb}", vr(a), vr(d, 4))

    def mm(j, nb):
        h, mb = j >> 3, j & 7
        if P.do_gemm:
            p.mfma16(acc(mb, nb), wf(h, nb), G_EF + 4 * j, acc(mb, nb))

    for f in range(F + 1):
        p.comment(f"---- G iteration {f}")
        if f < F:
            p.wait(vm=wtok.get(f), lg=p.lg_issued - 1)
            p.barrier()
            if f + 2 < F:
                wdma_setup(f + 2)
        for t in range(32):
            if f < F:
                if t < 4:
                    rd_w(f, 0, t >> 1, t & 1)
                elif t < 20:
                    rd_e(f, t - 4)
                elif t < 24:
                    rd_w(f, 1, (t - 20) >> 1, t & 1)
                if t in P.wdma_pos and f + 2 < F:
                    wdma(f + 2, P.wdma_pos.index(t))
            if t < 16:
                if f > 0:
                    mm(8 + t // 2, t & 1)
            elif f < F:
                mm((t - 16) // 2, t & 1)

    PS = G_EF
    TT = G_EF + 8
    for mb in range(8):
        for nb in range(2):
            a = acc(mb, nb)
            X = [TT + 16 * ((mb * 2 + nb) & 1) + r for r in range(4)]
            T_ = [x + 4 for x in X]
            E_ = [x + 8 for x in X]
            for r in range(4):
                p.valu(f"v_add_f32 v{X[r]}, v{a + r}, v{G_B1 + 4 * nb + r}", vr(a + r) + vr(G_B1 + 4 * nb + r), vr(X[r]))
            for r in range(4):
                p.valu(f"v_mul_f32 v{T_[r]}, v{X[r]}, v{X[r]}", vr(X[r]), vr(T_[r]))
            for r in range(4):
                p.valu(f"v_fmaak_f32 v{T_[r]}, v{T_[r]}, v{G_C2}, 0x{f32bits(c1):08x}", vr(T_[r]) + vr(G_C2), vr(T_[r]))
            for r in range(4):
                p.valu(f"v_mul_f32 v{T_[r]}, v{T_[r]}, v{X[r]}", vr(T_[r]) + vr(X[r]), vr(T_[r]))
            for r in range(4):
                p.valu(f"v_exp_f32 v{E_[r]}, v{T_[r]}", vr(T_[r]), vr(E_[r]), kind="trans")
            for r in range(4):
                p.valu(f"v_mul_f32 v{X[r]}, v{X[r]}, v{G_W2 + 4 * nb + r}", vr(X[r]) + vr(G_W2 + 4 * nb + r), vr(X[r]))
            for r in range(4):
                p.valu(f"v_add_f32 v{E_[r]}, 1.0, v{E_[r]}", vr(E_[r]), vr(E_[r]))
            for r in range(4):
                p.valu(f"v_rcp_f32 v{E_[r]}, v{E_[r]}", vr(E_[r]), vr(E_[r]), kind="trans")
            for r in range(4):
                if nb == 0 and r == 0:
                    p.valu(f"v_mul_f32 v{PS + mb}, v{X[r]}, v{E_[r]}", vr(X[r]) + vr(E_[r]), vr(PS + mb))
                else:
                    p.valu(f"v_fmac_f32 v{PS + mb}, v{X[r]}, v{E_[r]}", vr(X[r]) + vr(E_[r]) + vr(PS + mb), vr(PS + mb))
    for k in range(4):
        a, b = PS + 2 * k, PS + 2 * k + 1
        p.valu(f"v_permlane32_swap_b32 v{a}, v{b}", vr(a) + vr(b), vr(a) + vr(b), kind="perm")
    for k in range(4):
        a, b = PS + 2 * k, PS + 2 * k + 1
        p.valu(f"v_add_f32 v{a}, v{a}, v{b}", vr(a) + vr(b), vr(a))
    for k in range(2):
        a, b = PS + 4 * k, PS + 4 * k + 2
        p.valu(f"v_permlane16_swap_b32 v{a}, v{b}", vr(a) + vr(b), vr(a) + vr(b), kind="perm")
    for k in range(2):
        a, b = PS + 4 * k, PS + 4 * k + 2
        p.valu(f"v_add_f32 v{a}, v{a}, v{b}", vr(a) + vr(b), vr(a))
    p.valu(f"v_and_b32 v{t0}, 1, v{g}", vr(g), vr(t0))
    p.valu(f"v_lshrrev_b32 v{t1}, 1, v{g}", vr(g), vr(t1))
    p.valu(f"v_lshl_or_b32 v{t0}, v{t0}, 1, v{t1}", vr(t0) + vr(t1), vr(t0))
    p.valu(f"v_lshl_or_b32 v{t0}, v{t0}, 4, v{m}", vr(t0) + vr(m), vr(t0))
    p.salu(f"s_lshl_b32 s{S_T0}, s{S_HN}, 2", sr(S_HN), sr(S_T0))
    p.salu(f"s_add_u32 s{S_T0}, s{S_T0}, s{S_WAVE}", sr(S_T0) + sr(S_WAVE), sr(S_T0))
    p.salu(f"s_lshl_b32 s{S_T0}, s{S_T0}, 16", sr(S_T0), sr(S_T0))
    p.salu(f"s_lshl_b32 s{S_T1}, s{S_SB}, 2", sr(S_SB), sr(S_T1))
    p.salu(f"s_add_u32 s{S_T0}, s{S_T0}, s{S_T1}", sr(S_T0) + sr(S_T1), sr(S_T0))
    p.valu(f"v_lshl_add_u32 v{t0}, v{t0}, 2, s{S_T0}", vr(t0) + sr(S_T0), vr(t0))
    p.vmem(f"buffer_store_dword v{PS}, v{t0}, {S(SRD_B, 4)}, 0 offen", vr(PS) + vr(t0), [])
    p.vmem(f"buffer_store_dword v{PS + 4}, v{t0}, {S(SRD_B, 4)}, 0 offen offset:256", vr(PS + 4) + vr(t0), [])
    p.raw("    s_endpgm")


R_CH = 2
R_SEL, R_G16, R_WL = 4, 5, 6
R_T = 7
R_EA = 8
R_GA = 12
R_EI = 16
R_GI = 48
R_ACC = 76
R_WB = 92
R_PS = 104
R_RED = 108
R_EIO, R_GIO = 110, 111
R_POOL = 112
NPOOL = 18


def make_schedule():
    ntile = 16 * 28
    span = P.it1 - P.it0 + 1
    tiles = []
    loads = {}
    for s in range(16):
        start = P.it0 + (28 * s * span) // ntile
        held = []
        for b in range(7):
            a = 16 * b + P.align if b < 6 else 96 - 2
            latest = start - P.lead
            if a <= latest and latest - a <= P.wmax:
                held.append(b)
        rest = [b for b in range(7) if b not in held]
        order = held + rest
        first_use = {}
        k = 0
        for jj in range(7):
            for ii in range(jj + 1):
                a, b = order[ii], order[jj]
                it = P.it0 + ((28 * s + k) * span) // ntile
                tiles.append((s, min(a, b), max(a, b), it))
                first_use.setdefault(a, it)
                first_use.setdefault(b, it)
                k += 1
        for b in range(7):
            if b in held:
                li = 16 * b + P.align if b < 6 else 96 - 2
            else:
                li = first_use[b] - P.lead
            loads.setdefault(max(li, -1), []).append((s, b))
    return tiles, loads


def rwave(p):
    p.label("L_rwave")
    p.reset_state()
    p.nop(2)
    if P.prio_r:
        p.salu(f"s_setprio {P.prio_r}")
    t0 = R_T
    q, c, m, g = R_POOL, R_POOL + 1, R_POOL + 2, R_POOL + 3
    t1, t2 = R_POOL + 4, R_POOL + 5
    srd(p, SRD_B, S_IDX, B * F * 4)
    p.valu(f"v_lshrrev_b32 v{q}, 3, v0", ["v0"], vr(q))
    p.valu(f"v_and_b32 v{c}, 7, v0", ["v0"], vr(c))
    for k in range(3):
        p.salu(f"s_mov_b32 s{S_C3200 + k}, {3200 * (k + 1)}", [], sr(S_C3200 + k))
    p.salu(f"s_lshl_b32 s{S_T0}, s{S_WAVE}, 5", sr(S_WAVE), sr(S_T0))
    p.salu(f"s_add_u32 s{S_T0}, s{S_T0}, s{S_SB}", sr(S_T0) + sr(S_SB), sr(S_T0))
    p.valu(f"v_add_u32 v{t1}, s{S_T0}, v{q}", vr(q) + sr(S_T0), vr(t1))
    p.valu(f"v_mul_u32_u24 v{t1}, 400, v{t1}", vr(t1), vr(t1))
    p.valu(f"v_lshl_add_u32 v{R_EIO}, v{c}, 4, v{t1}", vr(c) + vr(t1), vr(R_EIO))

    def ei(G, j, comp=0):
        return R_EI + 16 * (G & 1) + 4 * j + comp

    def load_ei(G):
        for j in range(4):
            so = "0" if j == 0 else f"s{S_C3200 + j - 1}"
            p.vmem(f"buffer_load_dwordx4 {V(ei(G, j), 4)}, v{R_EIO}, {S(SRD_B, 4)}, {so} offen offset:{128 * G}",
                   vr(R_EIO), vr(ei(G, j), 4))

    def shift_ei(G):
        for j in range(4):
            for k in range(4):
                r = ei(G, j, k)
                p.valu(f"v_lshlrev_b32 v{r}, 7, v{r}", vr(r), vr(r))

    load_ei(0)
    p.valu(f"v_and_b32 v{m}, 15, v0", ["v0"], vr(m))
    p.valu(f"v_lshrrev_b32 v{g}, 4, v0", ["v0"], vr(g))
    p.salu(f"s_lshl_b32 s{S_T0}, s{S_WAVE}, 4", sr(S_WAVE), sr(S_T0))
    p.salu(f"s_lshl_b32 s{S_T1}, s{S_HN}, 6", sr(S_HN), sr(S_T1))
    p.salu(f"s_add_u32 s{S_T0}, s{S_T0}, s{S_T1}", sr(S_T0) + sr(S_T1), sr(S_T0))
    p.salu(f"s_add_u32 s{S_T2}, s{S_T0}, s{S_SB}", sr(S_T0) + sr(S_SB), sr(S_T2))
    p.valu(f"v_add_u32 v{t1}, s{S_T2}, v{g}", vr(g) + sr(S_T2), vr(t1))
    p.valu(f"v_mul_u32_u24 v{t1}, 400, v{t1}", vr(t1), vr(t1))
    p.valu(f"v_lshl_add_u32 v{R_GIO}, v{m}, 2, v{t1}", vr(m) + vr(t1), vr(R_GIO))

    def gi(u, b):
        return R_GI + 7 * u + b

    for u in range(4):
        for b in range(7):
            off = 1600 * u + 64 * b
            so = "0"
            if off > 4000:
                off -= 3200
                so = f"s{S_C3200}"
            p.vmem(f"buffer_load_dword v{gi(u, b)}, v{R_GIO}, {S(SRD_B, 4)}, {so} offen offset:{off}",
                   vr(R_GIO), vr(gi(u, b)))
    load_ei(1)
    srd(p, SRD_A, S_TAB, VOC * D * 2)
    p.valu(f"v_lshrrev_b32 v{t1}, 1, v{q}", vr(q), vr(t1))
    p.valu(f"v_xor_b32 v{t1}, v{t1}, v{c}", vr(t1) + vr(c), vr(t1))
    p.valu(f"v_lshlrev_b32 v{R_CH}, 4, v{t1}", vr(t1), vr(R_CH))
    p.valu(f"v_xor_b32 v{R_CH + 1}, 64, v{R_CH}", vr(R_CH), vr(R_CH + 1))
    p.valu(f"v_lshlrev_b32 v{R_SEL}, 2, v{m}", vr(m), vr(R_SEL))
    p.valu(f"v_lshlrev_b32 v{R_G16}, 4, v{g}", vr(g), vr(R_G16))
    p.valu(f"v_lshlrev_b32 v{R_WL}, 4, v0", ["v0"], vr(R_WL))
    p.valu(f"v_add_u32 v{R_WL}, {WT}, v{R_WL}", vr(R_WL), vr(R_WL))
    p.valu(f"v_cmp_gt_u32 {S(S_MJ, 2)}, 4, v{m}", vr(m), sr(S_MJ, 2))
    p.valu(f"v_mov_b32 v{t0}, 0x7fffff00", [], vr(t0))
    for k in range(4):
        p.valu(f"v_mov_b32 v{R_EA + k}, 0", [], vr(R_EA + k))

    etok = {}

    def edma(x):
        if not P.do_edma:
            return
        G, cc, comp = x >> 5, (x & 31) >> 2, x & 3
        for j in range(4):
            a = R_EA + j
            src = ei(G, j, comp)
            ch = R_CH + (j & 1)
            p.salu(f"s_add_u32 m0, s{S_W4K}, {ESLOT[x % NE] + 1024 * j}", sr(S_W4K), ["m0"])
            p.valu(f"v_or_b32_dpp v{a}, v{src}, v{ch} row_newbcast:{cc} row_mask:0xf bank_mask:0x3",
                   vr(src) + vr(ch) + vr(a), vr(a), kind="dpp", dpp=vr(src))
            p.valu(f"v_or_b32_dpp v{a}, v{src}, v{ch} row_newbcast:{8 + cc} row_mask:0xf bank_mask:0xc",
                   vr(src) + vr(ch) + vr(a), vr(a), kind="dpp", dpp=vr(src))
            etok[x] = p.vmem(f"buffer_load_dwordx4 v{a}, {S(SRD_A, 4)}, 0 offen lds", vr(a) + ["m0"], [], kind="dma")

    shift_ei(0)
    for x in range(4):
        edma(x)
    for u in range(4):
        for b in range(7):
            r = gi(u, b)
            p.valu(f"v_lshlrev_b32 v{r}, 7, v{r}", vr(r), vr(r))
            if b == 6:
                p.valu(f"v_cndmask_b32 v{r}, v{t0}, v{r}, {S(S_MJ, 2)}", vr(r) + vr(t0) + sr(S_MJ, 2), vr(r))

    tiles, loads = make_schedule()
    last_use = {}
    for n, (s, I, J, it) in enumerate(tiles):
        last_use[(s, I)] = n
        last_use[(s, J)] = n
    free = list(range(NPOOL))
    buf = {}
    garot = [0]
    peak = [0]

    def gload_addr(s, b):
        u, g0 = s >> 2, s & 3
        a = R_GA + garot[0] % 4
        garot[0] += 1
        off = f" offset:{64 * g0}" if g0 else ""
        p.ds(f"ds_bpermute_b32 v{a}, v{R_SEL}, v{gi(u, b)}{off}", vr(R_SEL) + vr(gi(u, b)), vr(a))
        return a

    def gload(s, b, a):
        assert free, f"operand pool exhausted at sample {s} block {b}"
        k = free.pop(0)
        peak[0] = max(peak[0], NPOOL - len(free))
        buf[(s, b)] = k
        d = R_POOL + 8 * k
        p.valu(f"v_or_b32 v{a}, v{a}, v{R_G16}", vr(a) + vr(R_G16), vr(a))
        if P.do_gload:
            p.vmem(f"buffer_load_dwordx4 {V(d, 4)}, v{a}, {S(SRD_A, 4)}, 0 offen", vr(a), vr(d, 4))
            p.vmem(f"buffer_load_dwordx4 {V(d + 4, 4)}, v{a}, {S(SRD_A, 4)}, 0 offen offset:64", vr(a), vr(d + 4, 4))

    def do_loads(lst, between=None):
        lst = list(lst)
        first = True
        while lst:
            grp, lst = lst[:4], lst[4:]
            addrs = [gload_addr(s, b) for s, b in grp]
            if first and between:
                between()
            first = False
            for (s, b), a in zip(grp, addrs):
                gload(s, b, a)
        if first and between:
            between()

    def wread(n):
        if n >= len(tiles):
            return
        s, I, J, it = tiles[n]
        d = R_WB + 4 * (n % 3)
        p.ds(f"ds_read_b128 {V(d, 4)}, v{R_WL} offset:{1024 * TIDX[(I, J)]}", vr(R_WL), vr(d, 4))

    def tile_mfma(n):
        s, I, J, it = tiles[n]
        a = R_POOL + 8 * buf[(s, I)]
        b = R_POOL + 8 * buf[(s, J)]
        d = R_ACC + 4 * (n % 4)
        p.mfma16(d, a, b, None)
        p.mfma16(d, a + 4, b + 4, d)
        for key in {(s, I), (s, J)}:
            if last_use[key] == n:
                free.append(buf.pop(key))

    def tile_fma(n):
        if n < 0:
            return
        s, I, J, it = tiles[n]
        d = R_ACC + 4 * (n % 4)
        w = R_WB + 4 * (n % 3)
        for r in range(4):
            if n % 28 == 0:
                p.valu(f"v_mul_f32 v{R_PS + r}, v{d + r}, v{w + r}", vr(d + r) + vr(w + r), vr(R_PS + r))
            else:
                p.valu(f"v_fmac_f32 v{R_PS + r}, v{d + r}, v{w + r}", vr(d + r) + vr(w + r) + vr(R_PS + r), vr(R_PS + r))
        if n % 28 == 27:
            x, y = R_RED, R_RED + 1
            p.valu(f"v_add_f32 v{x}, v{R_PS}, v{R_PS + 1}", vr(R_PS, 2), vr(x))
            p.valu(f"v_add_f32 v{y}, v{R_PS + 2}, v{R_PS + 3}", vr(R_PS + 2, 2), vr(y))
            p.valu(f"v_add_f32 v{x}, v{x}, v{y}", vr(x) + vr(y), vr(x))
            for ctl in ("row_shr:1 row_mask:0xf", "row_shr:2 row_mask:0xf", "row_shr:4 row_mask:0xf",
                        "row_shr:8 row_mask:0xf", "row_bcast:15 row_mask:0xa", "row_bcast:31 row_mask:0xc"):
                p.valu(f"v_add_f32_dpp v{x}, v{x}, v{x} {ctl} bank_mask:0xf", vr(x), vr(x), kind="dpp", dpp=vr(x))
            p.valu(f"v_readlane_b32 s{S_LP + s}, v{x}, 63", vr(x), sr(S_LP + s), kind="lane")

    if P.do_gram:
        do_loads(loads.get(-1, []))
    p.barrier()
    n = 0
    for f in range(P.it1 + 1):
        p.comment(f"---- R iteration {f}")
        if f < F:
            p.wait(vm=etok.get(f))
            p.barrier()

        def dmas():
            if f + 4 < F:
                edma(f + 4)
        if P.do_gram:
            do_loads(loads.get(f, []), dmas)
        else:
            dmas()
        if f in (8, 40, 72):
            shift_ei(f // 32 + 1)
        if f in (30, 62):
            load_ei(f // 32 + 2)
        if P.do_gram:
            while n < len(tiles) and tiles[n][3] == f:
                wread(n)
                tile_mfma(n)
                tile_fma(n - 2)
                n += 1
    if P.do_gram:
        assert n == len(tiles)
        tile_fma(n - 2)
        tile_fma(n - 1)
    else:
        for s in range(16):
            p.salu(f"s_mov_b32 s{S_LP + s}, 0", [], sr(S_LP + s))
    x = R_RED
    p.valu(f"v_mov_b32 v{x}, 0", [], vr(x))
    for s in range(16):
        p.valu(f"v_writelane_b32 v{x}, s{S_LP + s}, {s}", sr(S_LP + s) + vr(x), vr(x), kind="lane")
    srd(p, SRD_B, S_WS, 9 * 65536)
    p.salu(f"s_lshl_b32 s{S_T0}, s{S_T2}, 2", sr(S_T2), sr(S_T0))
    p.salu(f"s_add_u32 s{S_T0}, s{S_T0}, {8 * 65536}", sr(S_T0), sr(S_T0))
    p.valu(f"v_lshl_add_u32 v{t0}, v0, 2, s{S_T0}", ["v0"] + sr(S_T0), vr(t0))
    p.salu("s_mov_b64 exec, 0xffff", [], ["exec"])
    p.vmem(f"buffer_store_dword v{x}, v{t0}, {S(SRD_B, 4)}, 0 offen", vr(x) + vr(t0), [])
    p.label("L_end")
    p.raw("    s_endpgm")
    print(f"R: pool peak {peak[0]}/{NPOOL}, max vm outstanding {p.max_vm_out}", file=sys.stderr)


def combine(p):
    p.reset_state()
    p.raw("    s_cmp_ge_u32 s2, 64")
    p.raw("    s_cbranch_scc1 L_cend")
    p.raw("    s_load_dwordx4 s[4:7], s[0:1], 48")
    p.raw("    s_load_dwordx2 s[8:9], s[0:1], 72")
    p.salu("s_lshl_b32 s3, s2, 8", [], ["s3"])
    p.valu("v_add_u32 v1, s3, v0", ["s3", "v0"], ["v1"])
    p.valu("v_lshlrev_b32 v2, 2, v1", ["v1"], ["v2"])
    p.valu("v_lshlrev_b32 v3, 1, v1", ["v1"], ["v3"])
    p.valu("v_mov_b32 v4, 0", [], ["v4"])
    p.wait_smem()
    srd(p, 12, 8, 9 * 65536)
    srd(p, 16, 4, 2)
    srd(p, 20, 6, B * 2)
    for k in range(9):
        p.salu(f"s_mov_b32 s{24 + k}, {65536 * k}", [], sr(24 + k))
        p.vmem(f"buffer_load_dword v{8 + k}, v2, s[12:15], s{24 + k} offen", ["v2"], vr(8 + k))
    p.vmem("buffer_load_ushort v5, v4, s[16:19], 0 offen", ["v4"], ["v5"])
    for a, b in ((8, 9), (10, 11), (12, 13), (14, 15), (8, 10), (12, 14), (8, 12)):
        p.valu(f"v_add_f32 v{a}, v{a}, v{b}", vr(a) + vr(b), vr(a))
    p.valu("v_cvt_pk_bf16_f32 v8, v8, v16", ["v8", "v16"], ["v8"])
    p.valu("v_lshlrev_b32 v9, 16, v8", ["v8"], ["v9"])
    p.valu("v_and_b32 v10, 0xffff0000, v8", ["v8"], ["v10"])
    p.valu("v_lshlrev_b32 v5, 16, v5", ["v5"], ["v5"])
    p.valu("v_add_f32 v9, v9, v5", ["v9", "v5"], ["v9"])
    p.valu("v_cvt_pk_bf16_f32 v9, v9, v9", ["v9"], ["v9"])
    p.valu("v_lshlrev_b32 v9, 16, v9", ["v9"], ["v9"])
    p.valu("v_add_f32 v9, v9, v10", ["v9", "v10"], ["v9"])
    p.valu("v_cvt_pk_bf16_f32 v9, v9, v9", ["v9"], ["v9"])
    p.vmem("buffer_store_short v9, v3, s[20:23], 0 offen", ["v9", "v3"], [])
    p.label("L_cend")
    p.raw("    s_endpgm")


HEADER = """; Kernarg layout (80 bytes, ptrs only, base s[0:1]):
; @launch kernel={name}_kernel grid=(256,1,1) block=(512,1,1) lds={lds}
; @launch kernel=combine_kernel grid=(64,1,1) block=(256,1,1) lds=0
.amdgcn_target "amdgcn-amd-amdhsa--gfx950"
.text
"""

KD = """.amdhsa_kernel {k}
  .amdhsa_next_free_vgpr {v}
  .amdhsa_next_free_sgpr {s}
  .amdhsa_accum_offset {a}
  .amdhsa_group_segment_fixed_size 0
  .amdhsa_kernarg_size 80
  .amdhsa_user_sgpr_count 2
  .amdhsa_user_sgpr_kernarg_segment_ptr 1
  .amdhsa_system_sgpr_workgroup_id_x 1
  .amdhsa_float_denorm_mode_32 3
.end_amdhsa_kernel
"""


def build():
    out = HEADER.format(name=NAME, lds=LDS_BYTES)
    k = f"{NAME}_kernel"
    p = Prog()
    p.raw(f".globl {k}\n.p2align 8\n.type {k},@function\n{k}:")
    common_prologue(p)
    gwave(p)
    rwave(p)
    p.raw(".globl combine_kernel\n.p2align 8\n.type combine_kernel,@function\ncombine_kernel:")
    combine(p)
    out += p.text()
    out += '.section .rodata,"a"\n.p2align 6\n'
    out += KD.format(k=k, v=256, s=80, a=256)
    out += ".p2align 6\n"
    out += KD.format(k="combine_kernel", v=24, s=40, a=24)
    return out


if __name__ == "__main__":
    path = sys.argv[1] if len(sys.argv) > 1 else f"cdna_kernels/{NAME}.s"
    for kv in sys.argv[2:]:
        key, val = kv.split("=")
        setattr(P, key, eval(val))
    open(path, "w").write(build())
```

```python
import math
import struct
import sys

from asmlib import Prog, V, S, vr, sr

NAME = "standalone__deep_cross_pnn__recsys"
B, F, D, VOC, H = 16384, 100, 64, 100000, 256

G0 = 114688
GSTG = G0 + 16384
RAW = G0 + 28672


def NE():
    return P.ne


def NW():
    return 7 - P.ne


def ESLOT(f):
    return 16384 * (f % NE())


def WBASE():
    return 16384 * NE()


def WSLOT(f):
    return WBASE() + 16384 * (f % NW())
LDS_BYTES = 163840

TILES = [(i, j) for i in range(7) for j in range(i, 7)]
TIDX = {t: n for n, t in enumerate(TILES)}


def f32bits(x):
    return struct.unpack("<I", struct.pack("<f", x))[0]


class P:
    it0 = 9
    it1 = 103
    lead = 5
    wmax = 0
    align = 4
    wdma_pos = (1, 5, 9, 13)
    prio_g = 0
    prio_r = 2
    do_gram = True
    do_gemm = True
    do_edma = True
    do_wdma = True
    do_gload = True
    stamp = False
    ebits = ''
    wbits = ''
    gbits = ''
    ne = 4
    wb0 = 2
    dfirst = 2
    warm_w = True
    warm_t = False
    wfirst = True


S_IDX, S_TAB, S_WP, S_W1, S_B1, S_W2, S_B2, S_OUT, S_DBG, S_WS = 4, 6, 8, 10, 12, 14, 16, 18, 20, 22
S_WAVE = 3
S_PAIR = 24
S_HN = 25
S_SB = 26
S_T0, S_T1, S_T2, S_T3 = 27, 28, 29, 30
S_W4K = 31
SRD_A = 32
SRD_B = 36
S_C3200 = 40
S_MJ = 44
S_MI = 46
S_SOFF = 48
S_LP = 52


S_STA, S_STB = 70, 72


class Stamper:
    def __init__(self, p, va):
        self.p, self.va, self.pendB = p, va, None
        if P.stamp:
            for k in range(4):
                p.valu(f"v_mov_b32 v{va + k}, 0", [], vr(va + k))

    def before(self, f):
        if P.stamp:
            self.p.raw(f"    s_memtime s[{S_STA}:{S_STA + 1}]")
            self.p.wait_smem()
            self.p.valu(f"v_writelane_b32 v{self.va + (f >> 6)}, s{S_STA}, {f & 63}", vr(self.va + (f >> 6)), vr(self.va + (f >> 6)), kind="lane")
            if self.pendB is not None:
                g = self.pendB
                self.p.valu(f"v_writelane_b32 v{self.va + 2 + (g >> 6)}, s{S_STB}, {g & 63}", vr(self.va + 2 + (g >> 6)), vr(self.va + 2 + (g >> 6)), kind="lane")
                self.pendB = None

    def real(self, slot):
        if P.stamp:
            self.p.raw(f"    s_memrealtime s[{S_STA}:{S_STA + 1}]")
            self.p.wait_smem()
            self.p.valu(f"v_writelane_b32 v{self.va + (slot >> 6)}, s{S_STA}, {slot & 63}", vr(self.va + (slot >> 6)), vr(self.va + (slot >> 6)), kind="lane")

    def after(self, f):
        if P.stamp:
            self.p.raw(f"    s_memtime s[{S_STB}:{S_STB + 1}]")
            self.pendB = f

    def dump(self, role, tmp):
        if not P.stamp:
            return
        p = self.p
        self.before(127)
        self.real(122)
        p.salu("s_mov_b64 exec, -1", [], ["exec"])
        srd(p, SRD_B, S_WS, 16 << 20)
        p.salu(f"s_lshl_b32 s{S_T0}, s2, 3", [], sr(S_T0))
        p.salu(f"s_add_u32 s{S_T0}, s{S_T0}, s{S_WAVE}", sr(S_T0) + sr(S_WAVE), sr(S_T0))
        p.salu(f"s_add_u32 s{S_T0}, s{S_T0}, {4 * role}", sr(S_T0), sr(S_T0))
        p.salu(f"s_lshl_b32 s{S_T0}, s{S_T0}, 10", sr(S_T0), sr(S_T0))
        p.salu(f"s_add_u32 s{S_T0}, s{S_T0}, {1 << 20}", sr(S_T0), sr(S_T0))
        p.valu(f"v_lshl_add_u32 v{tmp}, v0, 2, s{S_T0}", ["v0"] + sr(S_T0), vr(tmp))
        for k in range(4):
            p.vmem(f"buffer_store_dword v{self.va + k}, v{tmp}, {S(SRD_B, 4)}, 0 offen offset:{256 * k}", vr(self.va + k) + vr(tmp), [])


def srd(p, d, base, nbytes):
    p.salu(f"s_mov_b32 s{d}, s{base}", sr(base), sr(d))
    p.salu(f"s_mov_b32 s{d + 1}, s{base + 1}", sr(base + 1), sr(d + 1))
    p.salu(f"s_mov_b32 s{d + 2}, {nbytes}", [], sr(d + 2))
    p.salu(f"s_mov_b32 s{d + 3}, 0x00020000", [], sr(d + 3))


def common_prologue(p):
    p.raw("    s_cmp_ge_u32 s2, 256")
    p.raw("    s_cbranch_scc1 L_end")
    p.raw("    s_load_dwordx16 s[4:19], s[0:1], 0")
    p.raw("    s_load_dwordx4 s[20:23], s[0:1], 64")
    p.valu("v_lshrrev_b32 v1, 6, v0", ["v0"], ["v1"])
    p.valu("v_and_b32 v0, 63, v0", ["v0"], ["v0"])
    p.valu(f"v_readfirstlane_b32 s{S_WAVE}, v1", ["v1"], sr(S_WAVE), kind="lane")
    p.salu(f"s_lshr_b32 s{S_PAIR}, s2, 4", [], sr(S_PAIR))
    p.salu(f"s_lshl_b32 s{S_PAIR}, s{S_PAIR}, 3", sr(S_PAIR), sr(S_PAIR))
    p.salu(f"s_and_b32 s{S_T0}, s2, 7", [], sr(S_T0))
    p.salu(f"s_add_u32 s{S_PAIR}, s{S_PAIR}, s{S_T0}", sr(S_PAIR) + sr(S_T0), sr(S_PAIR))
    p.salu(f"s_lshr_b32 s{S_HN}, s2, 3", [], sr(S_HN))
    p.salu(f"s_and_b32 s{S_HN}, s{S_HN}, 1", sr(S_HN), sr(S_HN))
    p.salu(f"s_lshl_b32 s{S_SB}, s{S_PAIR}, 7", sr(S_PAIR), sr(S_SB))
    p.salu(f"s_and_b32 s{S_T0}, s{S_WAVE}, 3", sr(S_WAVE), sr(S_T0))
    p.salu(f"s_lshl_b32 s{S_W4K}, s{S_T0}, 12", sr(S_T0), sr(S_W4K))
    p.salu(f"s_cmp_ge_u32 s{S_WAVE}, 4", sr(S_WAVE), [])
    p.salu(f"s_mov_b32 s{S_WAVE}, s{S_T0}", sr(S_T0), sr(S_WAVE))
    p.wait_smem()
    p.raw("    s_cbranch_scc1 L_rwave")


G_WOFF = 2
G_EA = 6
G_WA = 10
G_M, G_G = 12, 13
G_T = 14
G_ACC = 64
G_EF = 128
G_WF = 192
G_B1 = 208
G_W2 = 216
G_C1, G_C2 = 224, 225


def acc(mb, nb):
    return G_ACC + (mb * 2 + nb) * 4


def gwave(p):
    p.reset_state()
    if P.prio_g:
        p.salu(f"s_setprio {P.prio_g}")
    m, g = G_M, G_G
    t0, t1, t2, t3 = G_T, G_T + 1, G_T + 2, G_T + 3
    st = Stamper(p, 240)
    st.before(120)
    st.real(121)
    p.valu(f"v_and_b32 v{m}, 15, v0", ["v0"], vr(m))
    p.valu(f"v_lshrrev_b32 v{g}, 4, v0", ["v0"], vr(g))
    p.salu(f"s_lshl_b32 s{S_T1}, s{S_HN}, 8", sr(S_HN), sr(S_T1))
    WD = 40
    if P.warm_w:
        srd(p, SRD_A, S_W1, F * D * H * 2)
        p.salu(f"s_mul_i32 s{S_T0}, s2, 12800", [], sr(S_T0))
        p.salu(f"s_mul_i32 s{S_T2}, s{S_WAVE}, 3200", sr(S_WAVE), sr(S_T2))
        p.salu(f"s_add_u32 s{S_T0}, s{S_T0}, s{S_T2}", sr(S_T0) + sr(S_T2), sr(S_T0))
        p.valu(f"v_min_u32 v{t0}, 24, v0", ["v0"], vr(t0))
        p.valu(f"v_lshl_add_u32 v{t0}, v{t0}, 7, s{S_T0}", vr(t0) + sr(S_T0), vr(t0))
        p.vmem(f"buffer_load_dword v{WD}, v{t0}, {S(SRD_A, 4)}, 0 offen", vr(t0), vr(WD))
    if P.warm_t:
        srd(p, SRD_A, S_TAB, VOC * D * 2)
        p.salu(f"s_mul_i32 s{S_T0}, s2, {392 * 128}", [], sr(S_T0))
        p.salu(f"s_mul_i32 s{S_T2}, s{S_WAVE}, {98 * 128}", sr(S_WAVE), sr(S_T2))
        p.salu(f"s_add_u32 s{S_T0}, s{S_T0}, s{S_T2}", sr(S_T0) + sr(S_T2), sr(S_T0))
        p.valu(f"v_min_u32 v{t1}, 48, v0", ["v0"], vr(t1))
        p.valu(f"v_lshl_add_u32 v{t1}, v{t1}, 7, s{S_T0}", vr(t1) + sr(S_T0), vr(t1))
        p.salu(f"s_mov_b32 s{S_SOFF}, {49 * 128}", [], sr(S_SOFF))
        p.vmem(f"buffer_load_dword v{WD + 1}, v{t1}, {S(SRD_A, 4)}, 0 offen", vr(t1), vr(WD + 1))
        p.vmem(f"buffer_load_dword v{WD + 2}, v{t1}, {S(SRD_A, 4)}, s{S_SOFF} offen", vr(t1) + sr(S_SOFF), vr(WD + 2))
    p.salu(f"s_lshl_b32 s{S_T0}, s{S_WAVE}, 6", sr(S_WAVE), sr(S_T0))
    p.salu(f"s_add_u32 s{S_T0}, s{S_T0}, s{S_T1}", sr(S_T0) + sr(S_T1), sr(S_T0))
    p.valu(f"v_lshl_add_u32 v{t0}, v{g}, 3, s{S_T0}", vr(g) + sr(S_T0), vr(t0))
    BT = 32
    for k, base in enumerate((S_B1, S_W2)):
        srd(p, SRD_B, base, H * 2)
        for nb in range(2):
            d = BT + 4 * k + 2 * nb
            p.vmem(f"buffer_load_dwordx2 {V(d, 2)}, v{t0}, {S(SRD_B, 4)}, 0 offen offset:{32 * nb}",
                   vr(t0), vr(d, 2))
    p.valu(f"v_lshrrev_b32 v{t1}, 1, v{m}", vr(m), vr(t1))
    p.valu(f"v_xor_b32 v{t1}, v{t1}, v{g}", vr(t1) + vr(g), vr(t1))
    p.valu(f"v_lshlrev_b32 v{t2}, 7, v{m}", vr(m), vr(t2))
    p.valu(f"v_lshl_add_u32 v{G_EA}, v{t1}, 4, v{t2}", vr(t1) + vr(t2), vr(G_EA))
    p.valu(f"v_xor_b32 v{G_EA + 1}, 64, v{G_EA}", vr(G_EA), vr(G_EA + 1))
    p.valu(f"v_add_u32 v{G_EA + 2}, 0x10000, v{G_EA}", vr(G_EA), vr(G_EA + 2))
    p.valu(f"v_add_u32 v{G_EA + 3}, 0x10000, v{G_EA + 1}", vr(G_EA + 1), vr(G_EA + 3))
    r_, c4, X = t0, t1, t2
    p.valu(f"v_lshrrev_b32 v{r_}, 2, v{m}", vr(m), vr(r_))
    p.valu(f"v_and_b32 v{c4}, 3, v{m}", vr(m), vr(c4))
    p.valu(f"v_and_b32 v{X}, 1, v{g}", vr(g), vr(X))
    p.valu(f"v_lshl_or_b32 v{X}, v{X}, 2, v{r_}", vr(X) + vr(r_), vr(X))
    p.valu(f"v_lshlrev_b32 v{X}, 1, v{X}", vr(X), vr(X))
    p.valu(f"v_lshrrev_b32 v{t3}, 1, v{c4}", vr(c4), vr(t3))
    p.salu(f"s_lshl_b32 s{S_T0}, s{S_WAVE}, 2", sr(S_WAVE), sr(S_T0))
    p.valu(f"v_add_u32 v{t3}, s{S_T0}, v{t3}", vr(t3) + sr(S_T0), vr(t3))
    p.valu(f"v_xor_b32 v{t3}, v{t3}, v{X}", vr(t3) + vr(X), vr(t3))
    p.valu(f"v_lshl_add_u32 v{r_}, v{g}, 3, v{r_}", vr(g) + vr(r_), vr(r_))
    p.valu(f"v_lshlrev_b32 v{r_}, 8, v{r_}", vr(r_), vr(r_))
    p.valu(f"v_lshl_add_u32 v{r_}, v{t3}, 4, v{r_}", vr(t3) + vr(r_), vr(r_))
    p.valu(f"v_and_b32 v{c4}, 1, v{c4}", vr(c4), vr(c4))
    p.valu(f"v_lshl_add_u32 v{r_}, v{c4}, 3, v{r_}", vr(c4) + vr(r_), vr(r_))
    p.valu(f"v_add_u32 v{G_WA}, {WBASE()}, v{r_}", vr(r_), vr(G_WA))
    p.valu(f"v_xor_b32 v{G_WA + 1}, 32, v{G_WA}", vr(G_WA), vr(G_WA + 1))
    for i in range(64):
        p.valu(f"v_mov_b32 v{G_ACC + i}, 0", [], vr(G_ACC + i))
    c1 = -2.0 * math.log2(math.e) * math.sqrt(2.0 / math.pi)
    c2 = c1 * 0.044715
    p.valu(f"v_mov_b32 v{G_C2}, 0x{f32bits(c2):08x}", [], vr(G_C2))
    srd(p, SRD_B, S_WS, 9 * 65536)

    def wf(h, nb):
        return G_WF + (h * 2 + nb) * 4

    def rd_w(f, h, nb, q):
        d = wf(h, nb) + 2 * q
        off = WSLOT(f) - WBASE() + 8192 * h + 1024 * q
        p.ds(f"ds_read_b64_tr_b16 {V(d, 2)}, v{G_WA + nb} offset:{off}", vr(G_WA + nb), vr(d, 2))

    def rd_e(f, j):
        h, mb = j >> 3, j & 7
        base = ESLOT(f)
        a = G_EA + h
        if base >= 65536:
            base -= 65536
            a += 2
        d = G_EF + 4 * j
        p.ds(f"ds_read_b128 {V(d, 4)}, v{a} offset:{base + 2048 * mb}", vr(a), vr(d, 4))

    def mm(j, nb):
        h, mb = j >> 3, j & 7
        if P.do_gemm:
            p.mfma16(acc(mb, nb), wf(h, nb), G_EF + 4 * j, acc(mb, nb))

    for f in range(F + 1):
        p.comment(f"---- G iteration {f}")
        if f < F:
            st.before(f)
            if p.lg_issued:
                p.wait(lg=p.lg_issued - 1)
            p.barrier()
            st.after(f)
        for t in range(32):
            if f < F:
                if t < 4:
                    rd_w(f, 0, t >> 1, t & 1)
                elif t < 20:
                    rd_e(f, t - 4)
                elif t < 24:
                    rd_w(f, 1, (t - 20) >> 1, t & 1)
            if t < 16:
                if f > 0:
                    mm(8 + t // 2, t & 1)
            elif f < F:
                mm((t - 16) // 2, t & 1)

    st.before(101)
    for k, dst in enumerate((G_B1, G_W2)):
        for q in range(4):
            s = BT + 4 * k + q
            p.valu(f"v_lshlrev_b32 v{dst + 2 * q}, 16, v{s}", vr(s), vr(dst + 2 * q))
            p.valu(f"v_and_b32 v{dst + 2 * q + 1}, 0xffff0000, v{s}", vr(s), vr(dst + 2 * q + 1))
    PS = G_EF
    TT = G_EF + 8
    for mb in range(8):
        for nb in range(2):
            a = acc(mb, nb)
            X = [TT + 16 * ((mb * 2 + nb) & 1) + r for r in range(4)]
            T_ = [x + 4 for x in X]
            E_ = [x + 8 for x in X]
            for r in range(4):
                p.valu(f"v_add_f32 v{X[r]}, v{a + r}, v{G_B1 + 4 * nb + r}", vr(a + r) + vr(G_B1 + 4 * nb + r), vr(X[r]))
            for r in range(4):
                p.valu(f"v_mul_f32 v{T_[r]}, v{X[r]}, v{X[r]}", vr(X[r]), vr(T_[r]))
            for r in range(4):
                p.valu(f"v_fmaak_f32 v{T_[r]}, v{T_[r]}, v{G_C2}, 0x{f32bits(c1):08x}", vr(T_[r]) + vr(G_C2), vr(T_[r]))
            for r in range(4):
                p.valu(f"v_mul_f32 v{T_[r]}, v{T_[r]}, v{X[r]}", vr(T_[r]) + vr(X[r]), vr(T_[r]))
            for r in range(4):
                p.valu(f"v_exp_f32 v{E_[r]}, v{T_[r]}", vr(T_[r]), vr(E_[r]), kind="trans")
            for r in range(4):
                p.valu(f"v_mul_f32 v{X[r]}, v{X[r]}, v{G_W2 + 4 * nb + r}", vr(X[r]) + vr(G_W2 + 4 * nb + r), vr(X[r]))
            for r in range(4):
                p.valu(f"v_add_f32 v{E_[r]}, 1.0, v{E_[r]}", vr(E_[r]), vr(E_[r]))
            for r in range(4):
                p.valu(f"v_rcp_f32 v{E_[r]}, v{E_[r]}", vr(E_[r]), vr(E_[r]), kind="trans")
            for r in range(4):
                if nb == 0 and r == 0:
                    p.valu(f"v_mul_f32 v{PS + mb}, v{X[r]}, v{E_[r]}", vr(X[r]) + vr(E_[r]), vr(PS + mb))
                else:
                    p.valu(f"v_fmac_f32 v{PS + mb}, v{X[r]}, v{E_[r]}", vr(X[r]) + vr(E_[r]) + vr(PS + mb), vr(PS + mb))
    for k in range(4):
        a, b = PS + 2 * k, PS + 2 * k + 1
        p.valu(f"v_permlane32_swap_b32 v{a}, v{b}", vr(a) + vr(b), vr(a) + vr(b), kind="perm")
    for k in range(4):
        a, b = PS + 2 * k, PS + 2 * k + 1
        p.valu(f"v_add_f32 v{a}, v{a}, v{b}", vr(a) + vr(b), vr(a))
    for k in range(2):
        a, b = PS + 4 * k, PS + 4 * k + 2
        p.valu(f"v_permlane16_swap_b32 v{a}, v{b}", vr(a) + vr(b), vr(a) + vr(b), kind="perm")
    for k in range(2):
        a, b = PS + 4 * k, PS + 4 * k + 2
        p.valu(f"v_add_f32 v{a}, v{a}, v{b}", vr(a) + vr(b), vr(a))
    p.valu(f"v_and_b32 v{t0}, 1, v{g}", vr(g), vr(t0))
    p.valu(f"v_lshrrev_b32 v{t1}, 1, v{g}", vr(g), vr(t1))
    p.valu(f"v_lshl_or_b32 v{t0}, v{t0}, 1, v{t1}", vr(t0) + vr(t1), vr(t0))
    p.valu(f"v_lshl_or_b32 v{t0}, v{t0}, 4, v{m}", vr(t0) + vr(m), vr(t0))
    p.salu(f"s_lshl_b32 s{S_T0}, s{S_HN}, 2", sr(S_HN), sr(S_T0))
    p.salu(f"s_add_u32 s{S_T0}, s{S_T0}, s{S_WAVE}", sr(S_T0) + sr(S_WAVE), sr(S_T0))
    p.salu(f"s_lshl_b32 s{S_T0}, s{S_T0}, 16", sr(S_T0), sr(S_T0))
    p.salu(f"s_lshl_b32 s{S_T1}, s{S_SB}, 2", sr(S_SB), sr(S_T1))
    p.salu(f"s_add_u32 s{S_T0}, s{S_T0}, s{S_T1}", sr(S_T0) + sr(S_T1), sr(S_T0))
    p.valu(f"v_lshl_add_u32 v{t0}, v{t0}, 2, s{S_T0}", vr(t0) + sr(S_T0), vr(t0))
    p.vmem(f"buffer_store_dword v{PS}, v{t0}, {S(SRD_B, 4)}, 0 offen", vr(PS) + vr(t0), [])
    p.vmem(f"buffer_store_dword v{PS + 4}, v{t0}, {S(SRD_B, 4)}, 0 offen offset:256", vr(PS + 4) + vr(t0), [])
    st.dump(0, t1)
    p.raw("    s_endpgm")


R_CH = 2
R_SEL, R_WL = 4, 5
R_T = 6
R_GR = 7
R_EA = 12
R_EI = 16
R_GI = 48
R_ACC = 80
R_WB = 96
R_PS = 108
R_RED = 112
R_EIO, R_GIO = 114, 115
R_WO = 116
R_AW = 118
R_WREG = 120
R_POOL = 168
NPOOL = 11
SRD_W = 76
NLT = 16
S_STG = 50


def rwave(p):
    p.label("L_rwave")
    p.reset_state()
    p.nop(2)
    if P.prio_r:
        p.salu(f"s_setprio {P.prio_r}")
    t0 = R_T
    st = Stamper(p, 252)
    st.before(120)
    st.real(121)
    NB = NPOOL - (1 if P.stamp else 0)
    q, c, m, g = R_ACC, R_ACC + 1, R_ACC + 2, R_ACC + 3
    t1, t2 = R_ACC + 4, R_ACC + 5
    a1, a2 = R_ACC + 6, R_ACC + 7
    srd(p, SRD_B, S_IDX, B * F * 4)
    p.valu(f"v_lshrrev_b32 v{q}, 3, v0", ["v0"], vr(q))
    p.valu(f"v_and_b32 v{c}, 7, v0", ["v0"], vr(c))
    for k in range(3):
        p.salu(f"s_mov_b32 s{S_C3200 + k}, {3200 * (k + 1)}", [], sr(S_C3200 + k))
    p.salu(f"s_lshl_b32 s{S_T0}, s{S_WAVE}, 5", sr(S_WAVE), sr(S_T0))
    p.salu(f"s_add_u32 s{S_T0}, s{S_T0}, s{S_SB}", sr(S_T0) + sr(S_SB), sr(S_T0))
    p.valu(f"v_add_u32 v{t1}, s{S_T0}, v{q}", vr(q) + sr(S_T0), vr(t1))
    p.valu(f"v_mul_u32_u24 v{t1}, 400, v{t1}", vr(t1), vr(t1))
    p.valu(f"v_lshl_add_u32 v{R_EIO}, v{c}, 4, v{t1}", vr(c) + vr(t1), vr(R_EIO))

    def ei(G, j, comp=0):
        return R_EI + 16 * (G & 1) + 4 * j + comp

    def load_ei(G):
        for j in range(4):
            so = "0" if j == 0 else f"s{S_C3200 + j - 1}"
            p.vmem(f"buffer_load_dwordx4 {V(ei(G, j), 4)}, v{R_EIO}, {S(SRD_B, 4)}, {so} offen offset:{128 * G}",
                   vr(R_EIO), vr(ei(G, j), 4))

    def shift_ei(G):
        for j in range(4):
            for k in range(4):
                r = ei(G, j, k)
                p.valu(f"v_lshlrev_b32 v{r}, 7, v{r}", vr(r), vr(r))

    load_ei(0)
    p.valu(f"v_and_b32 v{m}, 15, v0", ["v0"], vr(m))
    p.valu(f"v_lshrrev_b32 v{g}, 4, v0", ["v0"], vr(g))
    srd(p, SRD_W, S_W1, F * D * H * 2)
    p.salu(f"s_lshl_b32 s{S_T0}, s{S_WAVE}, 13", sr(S_WAVE), sr(S_T0))
    p.salu(f"s_lshl_b32 s{S_T1}, s{S_HN}, 8", sr(S_HN), sr(S_T1))
    p.salu(f"s_add_u32 s{S_T0}, s{S_T0}, s{S_T1}", sr(S_T0) + sr(S_T1), sr(S_T0))
    p.valu(f"v_lshl_add_u32 v{t2}, v{g}, 9, s{S_T0}", vr(g) + sr(S_T0), vr(t2))
    p.valu(f"v_lshlrev_b32 v{t1}, 1, v{g}", vr(g), vr(t1))
    p.valu(f"v_xor_b32 v{t1}, v{t1}, v{m}", vr(t1) + vr(m), vr(t1))
    p.valu(f"v_lshl_add_u32 v{R_WO}, v{t1}, 4, v{t2}", vr(t1) + vr(t2), vr(R_WO))
    p.valu(f"v_xor_b32 v{R_WO + 1}, 128, v{R_WO}", vr(R_WO), vr(R_WO + 1))

    wtok = {}
    etok = {}

    def wdma(f, i):
        if not P.do_wdma:
            return
        so = S_SOFF + (i & 1)
        p.salu(f"s_add_u32 m0, s{S_W4K}, {WSLOT(f)}", sr(S_W4K), ["m0"])
        p.salu(f"s_mov_b32 s{so}, {f * 32768 + 1024 * i}", [], sr(so))
        off = f" offset:{1024 * i}" if i else ""
        wtok[f] = p.vmem(f"buffer_load_dwordx4 v{R_WO + (i >> 1)}, {S(SRD_W, 4)}, s{so} offen{off}{P.wbits} lds",
                         vr(R_WO + (i >> 1)) + ["m0"] + sr(so), [], kind="dma")

    earot = [0]

    def gather(src, cc, par, m0base, m0off):
        a = R_EA + earot[0] % 4
        earot[0] += 1
        ch = R_CH + par
        p.salu(f"s_add_u32 m0, s{m0base}, {m0off}", sr(m0base), ["m0"])
        p.valu(f"v_or_b32_dpp v{a}, v{src}, v{ch} row_newbcast:{cc} row_mask:0xf bank_mask:0x3",
               vr(src) + vr(ch) + vr(a), vr(a), kind="dpp", dpp=vr(src))
        p.valu(f"v_or_b32_dpp v{a}, v{src}, v{ch} row_newbcast:{8 + cc} row_mask:0xf bank_mask:0xc",
               vr(src) + vr(ch) + vr(a), vr(a), kind="dpp", dpp=vr(src))
        return a

    def edma(x, j):
        if not P.do_edma:
            return
        G, cc, comp = x >> 5, (x & 31) >> 2, x & 3
        a = gather(ei(G, j, comp), cc, j & 1, S_W4K, ESLOT(x) + 1024 * j)
        etok[x] = p.vmem(f"buffer_load_dwordx4 v{a}, {S(SRD_A, 4)}, 0 offen{P.ebits} lds", vr(a) + ["m0"], [], kind="dma")

    for i in range(4):
        wdma(0, i)
    srd(p, SRD_A, S_TAB, VOC * D * 2)
    p.valu(f"v_lshrrev_b32 v{t1}, 1, v{q}", vr(q), vr(t1))
    p.valu(f"v_xor_b32 v{t1}, v{t1}, v{c}", vr(t1) + vr(c), vr(t1))
    p.valu(f"v_lshlrev_b32 v{R_CH}, 4, v{t1}", vr(t1), vr(R_CH))
    p.valu(f"v_xor_b32 v{R_CH + 1}, 64, v{R_CH}", vr(R_CH), vr(R_CH + 1))
    for k in range(4):
        p.valu(f"v_mov_b32 v{R_EA + k}, 0", [], vr(R_EA + k))
    p.salu(f"s_lshl_b32 s{S_T0}, s{S_WAVE}, 4", sr(S_WAVE), sr(S_T0))
    p.salu(f"s_lshl_b32 s{S_T1}, s{S_HN}, 6", sr(S_HN), sr(S_T1))
    p.salu(f"s_add_u32 s{S_T0}, s{S_T0}, s{S_T1}", sr(S_T0) + sr(S_T1), sr(S_T0))
    p.salu(f"s_add_u32 s{S_T2}, s{S_T0}, s{S_SB}", sr(S_T0) + sr(S_SB), sr(S_T2))
    p.salu(f"s_mul_i32 s{S_T0}, s{S_T2}, 400", sr(S_T2), sr(S_T0))
    p.valu(f"v_lshl_add_u32 v{R_GIO}, v0, 2, s{S_T0}", ["v0"] + sr(S_T0), vr(R_GIO))
    p.valu(f"v_lshl_add_u32 v{t1}, v{c}, 3, v{q}", vr(c) + vr(q), vr(t1))
    p.valu(f"v_lshlrev_b32 v{R_SEL}, 2, v{t1}", vr(t1), vr(R_SEL))
    p.valu(f"v_lshlrev_b32 v{R_WL}, 4, v0", ["v0"], vr(R_WL))
    p.valu(f"v_add_u32 v{R_WL}, {G0}, v{R_WL}", vr(R_WL), vr(R_WL))
    p.valu(f"v_cmp_gt_u32 {S(S_MJ, 2)}, 4, v{m}", vr(m), sr(S_MJ, 2))
    p.valu(f"v_cmp_eq_u32 {S(S_MI, 2)}, 0, v{g}", vr(g), sr(S_MI, 2))
    p.salu(f"s_lshl_b32 s{S_STG}, s{S_WAVE}, 13", sr(S_WAVE), sr(S_STG))
    p.salu(f"s_add_u32 s{S_STG}, s{S_STG}, {GSTG}", sr(S_STG), sr(S_STG))
    for k, msk in ((0, 15), (2, 3)):
        p.valu(f"v_and_b32 v{t2}, {msk}, v{m}", vr(m), vr(t2))
        p.valu(f"v_lshrrev_b32 v{t1}, 1, v{t2}", vr(t2), vr(t1))
        p.valu(f"v_xor_b32 v{t1}, v{t1}, v{g}", vr(t1) + vr(g), vr(t1))
        p.valu(f"v_lshl_add_u32 v{t2}, v{t2}, 7, s{S_STG}", vr(t2) + sr(S_STG), vr(t2))
        p.valu(f"v_lshl_add_u32 v{R_GR + k}, v{t1}, 4, v{t2}", vr(t1) + vr(t2), vr(R_GR + k))
        p.valu(f"v_xor_b32 v{R_GR + k + 1}, 64, v{R_GR + k}", vr(R_GR + k), vr(R_GR + k + 1))
    aw = R_AW
    p.valu(f"v_lshlrev_b32 v{t2}, 2, v{g}", vr(g), vr(t2))
    p.valu(f"v_add_u32 v{t2}, s{S_WAVE}, v{t2}", vr(t2) + sr(S_WAVE), vr(t2))
    p.valu(f"v_mul_u32_u24 v{t1}, 200, v{t2}", vr(t2), vr(t1))
    p.valu(f"v_lshl_add_u32 v{a1}, v{m}, 1, v{t1}", vr(m) + vr(t1), vr(a1))
    p.valu(f"v_add_u32 v{a1}, {RAW}, v{a1}", vr(a1), vr(a1))
    p.valu(f"v_mul_u32_u24 v{t1}, 200, v{m}", vr(m), vr(t1))
    p.valu(f"v_lshl_add_u32 v{a2}, v{t2}, 1, v{t1}", vr(t2) + vr(t1), vr(a2))
    p.valu(f"v_add_u32 v{a2}, {RAW}, v{a2}", vr(a2), vr(a2))
    p.salu(f"s_lshl_b32 s{S_T0}, s{S_WAVE}, 2", sr(S_WAVE), sr(S_T0))
    p.salu(f"s_add_u32 s{S_T0}, s{S_T0}, {G0}", sr(S_T0), sr(S_T0))
    p.valu(f"v_lshl_add_u32 v{aw}, v0, 4, s{S_T0}", ["v0"] + sr(S_T0), vr(aw))
    WR = R_POOL

    stg = {}

    def raw_stage():
        SR = SRD_W + 4
        srd(p, SR, S_WP, F * F * 2)
        p.salu(f"s_mul_i32 s{S_T0}, s{S_WAVE}, 5120", sr(S_WAVE), sr(S_T0))
        p.valu(f"v_lshl_add_u32 v{t2}, v0, 4, s{S_T0}", ["v0"] + sr(S_T0), vr(t2))
        p.salu(f"s_add_u32 m0, s{S_T0}, {RAW}", sr(S_T0), ["m0"])
        for qq in range(4):
            off = f" offset:{1024 * qq}" if qq else ""
            p.vmem(f"buffer_load_dwordx4 v{t2}, {S(SR, 4)}, 0 offen{off} lds", vr(t2) + ["m0"], [], kind="dma")
        p.salu(f"s_add_u32 m0, s{S_T0}, {RAW + 4096}", sr(S_T0), ["m0"])
        p.salu(f"s_mov_b32 s{S_SOFF}, 4096", [], sr(S_SOFF))
        stg[0] = p.vmem(f"buffer_load_dwordx4 v{t2}, {S(SR, 4)}, s{S_SOFF} offen lds",
                        vr(t2) + ["m0"] + sr(S_SOFF), [], kind="dma")

    def wb_build():
        for n, (I, J) in enumerate(TILES):
            p.ds(f"ds_read_u16 v{WR + 2 * n}, v{a1} offset:{3200 * I + 32 * J}", vr(a1), vr(WR + 2 * n))
            if I != J:
                p.ds(f"ds_read_u16 v{WR + 2 * n + 1}, v{a2} offset:{3200 * J + 32 * I}", vr(a2), vr(WR + 2 * n + 1))
        for n, (I, J) in enumerate(TILES):
            x, y = WR + 2 * n, WR + 2 * n + 1
            p.valu(f"v_lshlrev_b32 v{x}, 16, v{x}", vr(x), vr(x))
            if I != J:
                p.valu(f"v_lshlrev_b32 v{y}, 16, v{y}", vr(y), vr(y))
                p.valu(f"v_add_f32 v{x}, v{x}, v{y}", vr(x) + vr(y), vr(x))
            if J == 6:
                p.valu(f"v_cndmask_b32 v{x}, 0, v{x}, {S(S_MJ, 2)}", vr(x) + sr(S_MJ, 2), vr(x))
            if I == 6:
                p.valu(f"v_cndmask_b32 v{x}, 0, v{x}, {S(S_MI, 2)}", vr(x) + sr(S_MI, 2), vr(x))
            p.ds(f"ds_write_b32 v{aw}, v{x} offset:{1024 * n}", vr(aw) + vr(x), [])

    def wb_fetch():
        for n in range(NLT, 28):
            d = R_WREG + 4 * (n - NLT)
            p.ds(f"ds_read_b128 {V(d, 4)}, v{R_WL} offset:{1024 * n}", vr(R_WL), vr(d, 4))

    def load_gi(s):
        for k in range(2):
            off = 400 * s + 256 * k
            so = "0"
            if off > 4000:
                off -= 3200
                so = f"s{S_C3200}"
            p.vmem(f"buffer_load_dword v{R_GI + 2 * s + k}, v{R_GIO}, {S(SRD_B, 4)}, {so} offen offset:{off}",
                   vr(R_GIO), vr(R_GI + 2 * s + k))

    def perm_gi(s):
        for k in range(2):
            r = R_GI + 2 * s + k
            p.valu(f"v_lshlrev_b32 v{r}, 7, v{r}", vr(r), vr(r))
            p.ds(f"ds_bpermute_b32 v{r}, v{R_SEL}, v{r}", vr(R_SEL) + vr(r), vr(r))

    tiles = []
    for s in range(16):
        for jj in range(7):
            for ii in range(jj + 1):
                tiles.append((s, ii, jj))
    NT = len(tiles)
    span = P.it1 - P.it0 + 1
    def tstep(n):
        return P.it0 + (n * span) // NT
    last_use = {}
    for n, (s, I, J) in enumerate(tiles):
        last_use[(s, I)] = n
        last_use[(s, J)] = n
    free = list(range(NB))
    buf = {}
    peak = [0]
    gtok = {}
    rtok = {}

    def gdma(u):
        if u >= 112:
            return
        s, b = divmod(u, 7)
        if u - 4 in rtok:
            p.wait(lg=rtok[u - 4])
        for hh in range(2 if b < 6 else 1):
            j = 2 * b + hh
            a = gather(R_GI + 2 * s + (j >> 3), j & 7, hh, S_STG, 2048 * (u % 4) + 1024 * hh)
            if P.do_gload:
                if b == 6:
                    p.salu("s_mov_b32 exec_hi, 0", [], ["exec"])
                gtok[u] = p.vmem(f"buffer_load_dwordx4 v{a}, {S(SRD_A, 4)}, 0 offen{P.gbits} lds", vr(a) + ["m0"], [], kind="dma")
                if b == 6:
                    p.salu("s_mov_b32 exec_hi, -1", [], ["exec"])
        if b == 3 and s + 1 < 16:
            perm_gi(s + 1)

    def gread(u):
        if u >= 112:
            return
        s, b = divmod(u, 7)
        assert free, f"operand pool exhausted at sample {s} block {b}"
        k = free.pop(0)
        peak[0] = max(peak[0], NB - len(free))
        buf[(s, b)] = k
        d = R_POOL + 8 * k
        if u in gtok:
            p.wait(vm=gtok[u])
        for hh in range(2):
            a = R_GR + (2 if b == 6 else 0) + hh
            rtok[u] = p.ds(f"ds_read_b128 {V(d + 4 * hh, 4)}, v{a} offset:{2048 * (u % 4)}", vr(a), vr(d + 4 * hh, 4))

    def wreg(n):
        s, I, J = tiles[n]
        ti = TIDX[(I, J)]
        return R_WB + 4 * (n % 3) if ti < NLT else R_WREG + 4 * (ti - NLT)

    def wread(n):
        s, I, J = tiles[n]
        ti = TIDX[(I, J)]
        if ti < NLT:
            d = wreg(n)
            p.ds(f"ds_read_b128 {V(d, 4)}, v{R_WL} offset:{1024 * ti}", vr(R_WL), vr(d, 4))

    def tile_mfma(n):
        s, I, J = tiles[n]
        a = R_POOL + 8 * buf[(s, I)]
        b = R_POOL + 8 * buf[(s, J)]
        d = R_ACC + 4 * (n % 4)
        p.mfma16(d, a, b, None)
        p.mfma16(d, a + 4, b + 4, d)
        for key in {(s, I), (s, J)}:
            if last_use[key] == n:
                free.append(buf.pop(key))

    def tile_fma(n):
        if n < 0:
            return
        s, I, J = tiles[n]
        d = R_ACC + 4 * (n % 4)
        w = wreg(n)
        for r in range(4):
            if n % 28 == 0:
                p.valu(f"v_mul_f32 v{R_PS + r}, v{d + r}, v{w + r}", vr(d + r) + vr(w + r), vr(R_PS + r))
            else:
                p.valu(f"v_fmac_f32 v{R_PS + r}, v{d + r}, v{w + r}", vr(d + r) + vr(w + r) + vr(R_PS + r), vr(R_PS + r))
        if n % 28 == 27:
            x, y = R_RED, R_RED + 1
            p.valu(f"v_add_f32 v{x}, v{R_PS}, v{R_PS + 1}", vr(R_PS, 2), vr(x))
            p.valu(f"v_add_f32 v{y}, v{R_PS + 2}, v{R_PS + 3}", vr(R_PS + 2, 2), vr(y))
            p.valu(f"v_add_f32 v{x}, v{x}, v{y}", vr(x) + vr(y), vr(x))
            for ctl in ("row_shr:1 row_mask:0xf", "row_shr:2 row_mask:0xf", "row_shr:4 row_mask:0xf",
                        "row_shr:8 row_mask:0xf", "row_bcast:15 row_mask:0xa", "row_bcast:31 row_mask:0xc"):
                p.valu(f"v_add_f32_dpp v{x}, v{x}, v{x} {ctl} bank_mask:0xf", vr(x), vr(x), kind="dpp", dpp=vr(x))
            p.valu(f"v_readlane_b32 s{S_LP + s}, v{x}, 63", vr(x), sr(S_LP + s), kind="lane")

    def vtile(n):
        if (n + 8) % 4 == 0 and n + 8 >= 0:
            gread((n + 8) // 4)
        if (n + 8) % 4 == 1 and n + 8 >= 0:
            gdma((n + 8) // 4 + 4)
        if 0 <= n < NT:
            wread(n)
            tile_mfma(n)
            tile_fma(n - 2)

    st.before(109)
    shift_ei(0)
    st.before(110)
    for j in range(4):
        edma(0, j)
    for i in range(4):
        wdma(1, i)
    for j in range(4):
        edma(1, j)
    st.before(111)
    WB = P.wb0
    GS = WB + 2
    n = -8
    assert tstep(-8) > GS
    for f in range(P.it1 + 1):
        p.comment(f"---- R iteration {f}")
        if f < F:
            st.before(f)
            toks = [t for t in (etok.get(f), wtok.get(f), stg[0] if f == WB else None) if t is not None]
            p.wait(vm=max(toks) if toks else None, lg=(p.lg_issued - 1 if f in (WB + 1, WB + 2) else None))
            p.barrier()
            st.after(f)
        jobs = []
        if f == 0:
            jobs += [raw_stage]
            for x in range(2, NW()):
                jobs += [(lambda x=x, i=i: wdma(x, i)) for i in range(4)]
            jobs += [(lambda j=j: edma(2, j)) for j in range(4)]
            jobs += [lambda: load_gi(0), lambda: load_gi(1)]
        else:
            if f == 1:
                for x in range(3, NE()):
                    jobs += [(lambda x=x, j=j: edma(x, j)) for j in range(4)]
            if f + NW() - 1 < F:
                jobs += [(lambda i=i: wdma(f + NW() - 1, i)) for i in range(4)]
            if f + NE() - 1 < F:
                jobs += [(lambda j=j: edma(f + NE() - 1, j)) for j in range(4)]
            if f == 2:
                jobs += [lambda: load_ei(1)]
            if 3 <= f < 17:
                jobs += [lambda: load_gi(f - 1)]
        if f in (8, 40, 72):
            jobs += [lambda: shift_ei(f // 32 + 1)]
        if f in (30, 62):
            jobs += [lambda: load_ei(f // 32 + 2)]
        if f == WB:
            jobs += [wb_build]
        if f == WB + 1:
            jobs += [wb_fetch]
        if f == GS and P.do_gram:
            jobs += [lambda: perm_gi(0)] + [(lambda u=u: gdma(u)) for u in range(4)]
        slots = []
        if P.do_gram:
            while n < NT and tstep(n) == f:
                slots.append(n)
                n += 1
        head, rest = jobs[:P.dfirst], jobs[P.dfirst:]
        for jb in head:
            jb()
        k = 0
        for i, sl in enumerate(slots):
            vtile(sl)
            upto = (len(rest) * (i + 1) + len(slots) - 1) // len(slots)
            while k < upto:
                rest[k]()
                k += 1
        while k < len(rest):
            rest[k]()
            k += 1
    if P.do_gram:
        assert n == NT
        tile_fma(n - 2)
        tile_fma(n - 1)
    else:
        for s in range(16):
            p.salu(f"s_mov_b32 s{S_LP + s}, 0", [], sr(S_LP + s))
    x = R_RED
    p.valu(f"v_mov_b32 v{x}, 0", [], vr(x))
    for s in range(16):
        p.valu(f"v_writelane_b32 v{x}, s{S_LP + s}, {s}", sr(S_LP + s) + vr(x), vr(x), kind="lane")
    srd(p, SRD_B, S_WS, 9 * 65536)
    p.salu(f"s_lshl_b32 s{S_T0}, s{S_T2}, 2", sr(S_T2), sr(S_T0))
    p.salu(f"s_add_u32 s{S_T0}, s{S_T0}, {8 * 65536}", sr(S_T0), sr(S_T0))
    p.valu(f"v_lshl_add_u32 v{t0}, v0, 2, s{S_T0}", ["v0"] + sr(S_T0), vr(t0))
    p.salu("s_mov_b64 exec, 0xffff", [], ["exec"])
    p.vmem(f"buffer_store_dword v{x}, v{t0}, {S(SRD_B, 4)}, 0 offen", vr(x) + vr(t0), [])
    st.dump(1, R_EA)
    p.label("L_end")
    p.raw("    s_endpgm")
    print(f"R: pool peak {peak[0]}/{NB}, max vm outstanding {p.max_vm_out}", file=sys.stderr)


def combine(p):
    p.reset_state()
    p.raw("    s_cmp_ge_u32 s2, 64")
    p.raw("    s_cbranch_scc1 L_cend")
    p.raw("    s_load_dwordx4 s[4:7], s[0:1], 48")
    p.raw("    s_load_dwordx2 s[8:9], s[0:1], 72")
    p.salu("s_lshl_b32 s3, s2, 8", [], ["s3"])
    p.valu("v_add_u32 v1, s3, v0", ["s3", "v0"], ["v1"])
    p.valu("v_lshlrev_b32 v2, 2, v1", ["v1"], ["v2"])
    p.valu("v_lshlrev_b32 v3, 1, v1", ["v1"], ["v3"])
    p.valu("v_mov_b32 v4, 0", [], ["v4"])
    p.wait_smem()
    srd(p, 12, 8, 9 * 65536)
    srd(p, 16, 4, 2)
    srd(p, 20, 6, B * 2)
    for k in range(9):
        p.salu(f"s_mov_b32 s{24 + k}, {65536 * k}", [], sr(24 + k))
        p.vmem(f"buffer_load_dword v{8 + k}, v2, s[12:15], s{24 + k} offen", ["v2"], vr(8 + k))
    p.vmem("buffer_load_ushort v5, v4, s[16:19], 0 offen", ["v4"], ["v5"])
    for a, b in ((8, 9), (10, 11), (12, 13), (14, 15), (8, 10), (12, 14), (8, 12)):
        p.valu(f"v_add_f32 v{a}, v{a}, v{b}", vr(a) + vr(b), vr(a))
    p.valu("v_cvt_pk_bf16_f32 v8, v8, v16", ["v8", "v16"], ["v8"])
    p.valu("v_lshlrev_b32 v9, 16, v8", ["v8"], ["v9"])
    p.valu("v_and_b32 v10, 0xffff0000, v8", ["v8"], ["v10"])
    p.valu("v_lshlrev_b32 v5, 16, v5", ["v5"], ["v5"])
    p.valu("v_add_f32 v9, v9, v5", ["v9", "v5"], ["v9"])
    p.valu("v_cvt_pk_bf16_f32 v9, v9, v9", ["v9"], ["v9"])
    p.valu("v_lshlrev_b32 v9, 16, v9", ["v9"], ["v9"])
    p.valu("v_add_f32 v9, v9, v10", ["v9", "v10"], ["v9"])
    p.valu("v_cvt_pk_bf16_f32 v9, v9, v9", ["v9"], ["v9"])
    p.vmem("buffer_store_short v9, v3, s[20:23], 0 offen", ["v9", "v3"], [])
    p.label("L_cend")
    p.raw("    s_endpgm")


HEADER = """; Kernarg layout (80 bytes, ptrs only, base s[0:1]):
; @launch kernel={name}_kernel grid=(256,1,1) block=(512,1,1) lds={lds}
; @launch kernel=combine_kernel grid=(64,1,1) block=(256,1,1) lds=0
.amdgcn_target "amdgcn-amd-amdhsa--gfx950"
.text
"""

KD = """.amdhsa_kernel {k}
  .amdhsa_next_free_vgpr {v}
  .amdhsa_next_free_sgpr {s}
  .amdhsa_accum_offset {a}
  .amdhsa_group_segment_fixed_size 0
  .amdhsa_kernarg_size 80
  .amdhsa_user_sgpr_count 2
  .amdhsa_user_sgpr_kernarg_segment_ptr 1
  .amdhsa_system_sgpr_workgroup_id_x 1
  .amdhsa_float_denorm_mode_32 3
.end_amdhsa_kernel
"""


def build():
    out = HEADER.format(name=NAME, lds=LDS_BYTES)
    k = f"{NAME}_kernel"
    p = Prog()
    p.raw(f".globl {k}\n.p2align 8\n.type {k},@function\n{k}:")
    common_prologue(p)
    gwave(p)
    rwave(p)
    p.raw(".globl combine_kernel\n.p2align 8\n.type combine_kernel,@function\ncombine_kernel:")
    combine(p)
    out += p.text()
    out += '.section .rodata,"a"\n.p2align 6\n'
    out += KD.format(k=k, v=256, s=88, a=256)
    out += ".p2align 6\n"
    out += KD.format(k="combine_kernel", v=24, s=40, a=24)
    return out


if __name__ == "__main__":
    path = sys.argv[1] if len(sys.argv) > 1 else f"cdna_kernels/{NAME}.s"
    for kv in sys.argv[2:]:
        key, val = kv.split("=")
        setattr(P, key, eval(val))
    open(path, "w").write(build())
```

```python
import math
import struct
import sys

from asmlib import Prog, V, S, vr, sr

NAME = "standalone__deep_cross_pnn__recsys"
B, F, D, VOC, H = 16384, 100, 64, 100000, 256
NX = 100
NF = 50

NE = 5
FLG = 81920
F_LAND, F_CONS, F_RS, F_GD, F_GO, F_WF = 0, 16, 32, 48, 64, 80
G0 = FLG + 1024
NLT = 15
GSTG = 131072
RAW = G0 + 27 * 1024
RED = G0 + 16 * 1024
LDS_BYTES = 163840
NWR = 5
WT0 = 98304

XBOX = 0
XFLG = 16 << 20
WPO = 20 << 20
WS_BYTES = WPO + F * D * H * 2

TILES = [(i, j) for i in range(7) for j in range(i, 7)]
TIDX = {t: n for n, t in enumerate(TILES)}


def I0():
    return (P.NL + 1) // 2


def EPREV(i):
    if i < 3 or i in (I0(), I0() + 1):
        return None
    return i - 3 if i < I0() else i - 5


def ESLOT(i):
    while EPREV(i) is not None:
        i = EPREV(i)
    return 16384 * (i if i < 3 else 3 + i - I0())


def f32bits(x):
    return struct.unpack("<I", struct.pack("<f", x))[0]


class P:
    sg = -1
    w0n = 2
    ig0 = 2
    prio_gs = 3
    trs = 16
    NL = 10
    dbld = 3
    ntail = 140
    prio_g = 0
    prio_r = 2
    do_gram = True
    do_gemm = True
    do_edma = True
    do_wld = True
    do_gload = True
    do_xchg = True
    stamp = False
    stev = 10
    JR = 8
    FT = 50
    sps = 8
    xf = 3
    xp = 8
    flr = 14
    plag = 2
    djobs = 1
    spin = 40000
    wsc = " sc1"


S_IDX, S_TAB, S_WP, S_W1, S_B1, S_W2, S_B2, S_OUT, S_DBG, S_WS = 4, 6, 8, 10, 12, 14, 16, 18, 20, 22
S_WAVE = 3
S_PAIR = 24
S_HK = 25
S_SB = 26
S_T0, S_T1, S_T2, S_T3 = 27, 28, 29, 30
S_W4K = 31
SRD_A = 32
SRD_B = 36
S_C3200 = 40
S_MJ = 44
S_MI = 46
S_SOFF = 48
S_WB = 49
S_STG = 50
S_CNT = 51
S_LP = 52
S_STA = 70
SRD_W = 76
SRD_C = 80


class Stamper:
    def __init__(self, p, va):
        self.p, self.va = p, va
        if P.stamp:
            for k in range(2):
                p.valu(f"v_mov_b32 v{va + k}, 0", [], vr(va + k))

    def at(self, f, real=False):
        if P.stamp:
            self.p.raw(f"    {'s_memrealtime' if real else 's_memtime'} s[{S_STA}:{S_STA + 1}]")
            self.p.wait_smem()
            r = self.va + (f >> 6)
            self.p.valu(f"v_writelane_b32 v{r}, s{S_STA}, {f & 63}", vr(r), vr(r), kind="lane")

    def val(self, f, sreg):
        if P.stamp:
            r = self.va + (f >> 6)
            self.p.valu(f"v_writelane_b32 v{r}, s{sreg}, {f & 63}", vr(r), vr(r), kind="lane")

    def dump(self, role, tmp):
        if not P.stamp:
            return
        p = self.p
        self.at(127)
        self.at(122, True)
        p.salu("s_mov_b64 exec, -1", [], ["exec"])
        srd(p, SRD_B, S_WS, 64 << 20)
        p.salu(f"s_lshl_b32 s{S_T0}, s2, 3", [], sr(S_T0))
        p.salu(f"s_add_u32 s{S_T0}, s{S_T0}, s{S_WAVE}", sr(S_T0) + sr(S_WAVE), sr(S_T0))
        p.salu(f"s_add_u32 s{S_T0}, s{S_T0}, {4 * role}", sr(S_T0), sr(S_T0))
        p.salu(f"s_lshl_b32 s{S_T0}, s{S_T0}, 9", sr(S_T0), sr(S_T0))
        p.salu(f"s_add_u32 s{S_T0}, s{S_T0}, {32 << 20}", sr(S_T0), sr(S_T0))
        p.valu(f"v_lshl_add_u32 v{tmp}, v0, 2, s{S_T0}", ["v0"] + sr(S_T0), vr(tmp))
        for k in range(2):
            p.vmem(f"buffer_store_dword v{self.va + k}, v{tmp}, {S(SRD_B, 4)}, 0 offen offset:{256 * k}", vr(self.va + k) + vr(tmp), [])


def srd(p, d, base, nbytes):
    p.salu(f"s_mov_b32 s{d}, s{base}", sr(base), sr(d))
    p.salu(f"s_mov_b32 s{d + 1}, s{base + 1}", sr(base + 1), sr(d + 1))
    p.salu(f"s_mov_b32 s{d + 2}, {nbytes}", [], sr(d + 2))
    p.salu(f"s_mov_b32 s{d + 3}, 0x00020000", [], sr(d + 3))


class Flags:
    def __init__(self, p, tag, v_pub, v_one, v_rd, v_val):
        self.p, self.tag = p, tag
        self.v_pub, self.v_one, self.v_rd, self.v_val = v_pub, v_one, v_rd, v_val
        self.slow = []

    def setup(self, tmp):
        p = self.p
        p.salu(f"s_lshl_b32 s{S_T0}, s{S_WAVE}, 2", sr(S_WAVE), sr(S_T0))
        p.salu(f"s_add_u32 s{S_T0}, s{S_T0}, {FLG}", sr(S_T0), sr(S_T0))
        p.valu(f"v_lshlrev_b32 v{self.v_pub}, 2, v0", ["v0"], vr(self.v_pub))
        p.valu(f"v_add_u32 v{self.v_pub}, {FLG + 256}, v{self.v_pub}", vr(self.v_pub), vr(self.v_pub))
        p.valu(f"v_writelane_b32 v{self.v_pub}, s{S_T0}, 0", sr(S_T0) + vr(self.v_pub), vr(self.v_pub), kind="lane")
        p.valu(f"v_mov_b32 v{self.v_one}, 1", [], vr(self.v_one))
        p.salu(f"s_mov_b32 s{S_CNT}, {1 << 20}", [], sr(S_CNT))
        p.valu(f"v_and_b32 v{tmp}, 3, v0", ["v0"], vr(tmp))
        p.valu(f"v_lshlrev_b32 v{tmp}, 2, v{tmp}", vr(tmp), vr(tmp))
        p.valu(f"v_add_u32 v{self.v_rd}, {FLG}, v{tmp}", vr(tmp), vr(self.v_rd))

    def publish(self, off):
        o = f" offset:{off}" if off else ""
        self.p.ds(f"ds_add_u32 v{self.v_pub}, v{self.v_one}{o}", vr(self.v_pub) + vr(self.v_one), [])

    def read(self, off):
        self.off = off
        o = f" offset:{off}" if off else ""
        self.p.ds(f"ds_read_b32 v{self.v_val}, v{self.v_rd}{o}", vr(self.v_rd), vr(self.v_val))

    def cmp(self, need):
        self.p.valu(f"v_cmp_gt_u32 vcc, {need}, v{self.v_val}", vr(self.v_val), ["vcc"])
        self.need = need

    def branch(self):
        k = len(self.slow)
        self.p.salu(f"s_cbranch_vccnz L_{self.tag}s{k}", ["vcc"], [])
        self.p.label(f"L_{self.tag}b{k}")
        self.slow.append((self.need, self.off, self.v_val))

    def wait(self, off, need, val=None):
        save = (self.v_val, getattr(self, "off", 0), getattr(self, "need", 0))
        if val is not None:
            self.v_val = val
        self.read(off)
        self.cmp(need)
        self.p.nop(2)
        self.branch()
        self.v_val, self.off, self.need = save

    def emit_slow(self):
        p = self.p
        for k, (need, off, val) in enumerate(self.slow):
            p.label(f"L_{self.tag}s{k}")
            p.raw(f"    ds_read_b32 v{val}, v{self.v_rd}" + (f" offset:{off}" if off else ""))
            p.raw("    s_waitcnt lgkmcnt(0)")
            p.raw(f"    v_cmp_gt_u32 vcc, {need}, v{val}")
            p.raw(f"    s_sub_i32 s{S_CNT}, s{S_CNT}, 1")
            p.raw(f"    s_cmp_lt_i32 s{S_CNT}, 0")
            p.raw(f"    s_cbranch_scc1 L_{self.tag}b{k}")
            p.raw(f"    s_cbranch_vccnz L_{self.tag}s{k}")
            p.raw(f"    s_branch L_{self.tag}b{k}")


def common_prologue(p):
    p.raw("    s_cmp_ge_u32 s2, 256")
    p.raw("    s_cbranch_scc1 L_end")
    p.raw("    s_load_dwordx16 s[4:19], s[0:1], 0")
    p.raw("    s_load_dwordx4 s[20:23], s[0:1], 64")
    p.valu("v_lshrrev_b32 v1, 6, v0", ["v0"], ["v1"])
    p.valu("v_and_b32 v0, 63, v0", ["v0"], ["v0"])
    p.valu(f"v_readfirstlane_b32 s{S_WAVE}, v1", ["v1"], sr(S_WAVE), kind="lane")
    p.salu(f"s_lshr_b32 s{S_PAIR}, s2, 4", [], sr(S_PAIR))
    p.salu(f"s_lshl_b32 s{S_PAIR}, s{S_PAIR}, 3", sr(S_PAIR), sr(S_PAIR))
    p.salu(f"s_and_b32 s{S_T0}, s2, 7", [], sr(S_T0))
    p.salu(f"s_add_u32 s{S_PAIR}, s{S_PAIR}, s{S_T0}", sr(S_PAIR) + sr(S_T0), sr(S_PAIR))
    p.salu(f"s_lshr_b32 s{S_HK}, s2, 3", [], sr(S_HK))
    p.salu(f"s_and_b32 s{S_HK}, s{S_HK}, 1", sr(S_HK), sr(S_HK))
    p.salu(f"s_lshl_b32 s{S_SB}, s{S_PAIR}, 7", sr(S_PAIR), sr(S_SB))
    p.salu(f"s_and_b32 s{S_T0}, s{S_WAVE}, 3", sr(S_WAVE), sr(S_T0))
    p.salu(f"s_lshl_b32 s{S_W4K}, s{S_T0}, 12", sr(S_T0), sr(S_W4K))
    p.salu(f"s_cmp_ge_u32 s{S_WAVE}, 4", sr(S_WAVE), [])
    p.salu(f"s_mov_b32 s{S_WAVE}, s{S_T0}", sr(S_T0), sr(S_WAVE))
    p.wait_smem()
    p.raw("    s_cbranch_scc1 L_rwave")

G_EA = 2
G_WV = 6
G_PUB, G_ONE, G_FRD, G_FV = 7, 8, 9, 10
G_T0, G_T1, G_T2 = 11, 14, 15
G_STAMP = 12
G_WF = 16
G_EF = 96
G_ACC = 128


def acc(mb, nb):
    return G_ACC + (mb * 4 + nb) * 4


def gwave(p):
    p.reset_state()
    p.salu(f"s_setprio {P.prio_gs}")
    T = G_ACC
    t0, t1, t2, t3, m, g = T, T + 1, T + 2, T + 3, T + 4, T + 5
    WO = G_WF + 64
    TA = G_WF + 68
    NL = P.NL
    assert NL % 4 == 2
    CS = NL - 2

    def wreg(k):
        return (49152, 65536, WT0, WT0 + 16384)[k if k < 2 else (k - 2) % 4] if k >= 0 else 32768
    PR = T + 16
    st = Stamper(p, G_STAMP)
    st.at(120)
    st.at(121, True)
    p.valu(f"v_mov_b32 v{t3}, 0", [], vr(t3))
    p.salu(f"s_lshl_b32 s{S_T0}, s{S_WAVE}, 8", sr(S_WAVE), sr(S_T0))
    p.salu(f"s_add_u32 s{S_T2}, s{S_T0}, {FLG}", sr(S_T0), sr(S_T2))
    p.valu(f"v_lshl_add_u32 v{t1}, v0, 2, s{S_T2}", ["v0"] + sr(S_T2), vr(t1))
    p.ds(f"ds_write_b32 v{t1}, v{t3}", vr(t1) + vr(t3), [])
    srd(p, SRD_W, S_W1, F * D * H * 2)
    p.valu(f"v_lshrrev_b32 v{t0}, 3, v0", ["v0"], vr(t0))
    p.valu(f"v_and_b32 v{t1}, 7, v0", ["v0"], vr(t1))
    p.valu(f"v_and_b32 v{t2}, 2, v{t0}", vr(t0), vr(t2))
    p.valu(f"v_xor_b32 v{t1}, v{t1}, v{t2}", vr(t1) + vr(t2), vr(t1))
    p.salu(f"s_lshl_b32 s{S_T0}, s{S_WAVE}, 7", sr(S_WAVE), sr(S_T0))
    p.valu(f"v_lshl_add_u32 v{t0}, v{t0}, 9, s{S_T0}", vr(t0) + sr(S_T0), vr(t0))
    p.valu(f"v_lshl_add_u32 v{WO}, v{t1}, 4, v{t0}", vr(t1) + vr(t0), vr(WO))
    p.valu(f"v_xor_b32 v{WO + 1}, 64, v{WO}", vr(WO), vr(WO + 1))
    p.salu(f"s_sub_u32 s{S_T1}, s2, 200", [], sr(S_T1))
    p.salu(f"s_cselect_b32 s{S_T1}, s2, s{S_T1}", sr(S_T1), sr(S_T1))
    p.salu(f"s_lshl_b32 s{S_T1}, s{S_T1}, 14", sr(S_T1), sr(S_T1))
    p.salu(f"s_mul_i32 s{S_WB}, s{S_HK}, {NX * 16384}", sr(S_HK), sr(S_WB))
    wtok = {}

    rtok = {}

    def wdma(k):
        prev = k - 2 if k < 4 else k - 4
        if k >= 2 and k not in (4, 5):
            p.wait(lg=rtok[prev])
        for i in range(4):
            base, off = (S_T1, 4096 * i) if k < 0 else (S_WB, 16384 * k + 4096 * i)
            p.salu(f"s_add_u32 s{S_SOFF}, s{base}, {off}", sr(base), sr(S_SOFF))
            p.salu(f"s_add_u32 m0, s{S_W4K}, {wreg(k) + 1024 * i}", sr(S_W4K), ["m0"])
            wtok[k] = p.vmem(f"buffer_load_dwordx4 v{WO + (i & 1)}, {S(SRD_W, 4)}, s{S_SOFF} offen lds",
                             vr(WO + (i & 1)) + ["m0"] + sr(S_SOFF), [], kind="dma")
    p.wait(lg=p.lg_issued - 1)
    p.barrier()
    st.at(114)
    wdma(-1)
    st.at(115)
    wdma(0)
    wdma(1)
    st.at(116)
    p.salu(f"s_lshl_b32 s{S_T0}, s{S_WAVE}, 8", sr(S_WAVE), sr(S_T0))
    srd(p, SRD_C, S_WS, WS_BYTES)
    p.salu(f"s_lshl_b32 s{S_T2}, s2, 10", [], sr(S_T2))
    p.salu(f"s_add_u32 s{S_T2}, s{S_T2}, s{S_T0}", sr(S_T2) + sr(S_T0), sr(S_T2))
    p.salu(f"s_add_u32 s{S_T2}, s{S_T2}, {XFLG}", sr(S_T2), sr(S_T2))
    p.valu(f"v_lshl_add_u32 v{t2}, v0, 2, s{S_T2}", ["v0"] + sr(S_T2), vr(t2))
    p.vmem(f"buffer_store_dword v{t3}, v{t2}, {S(SRD_C, 4)}, 0 offen sc1", vr(t3) + vr(t2), [])
    st.at(117)
    p.valu(f"v_and_b32 v{m}, 15, v0", ["v0"], vr(m))
    p.valu(f"v_lshrrev_b32 v{g}, 4, v0", ["v0"], vr(g))
    p.valu(f"v_lshrrev_b32 v{t1}, 1, v{m}", vr(m), vr(t1))
    p.valu(f"v_xor_b32 v{t1}, v{t1}, v{g}", vr(t1) + vr(g), vr(t1))
    p.valu(f"v_lshlrev_b32 v{t2}, 7, v{m}", vr(m), vr(t2))
    p.valu(f"v_lshl_add_u32 v{G_EA}, v{t1}, 4, v{t2}", vr(t1) + vr(t2), vr(G_EA))
    p.valu(f"v_xor_b32 v{G_EA + 1}, 64, v{G_EA}", vr(G_EA), vr(G_EA + 1))
    for k in range(2):
        p.valu(f"v_add_u32 v{G_EA + 2 + k}, 0x10000, v{G_EA + k}", vr(G_EA + k), vr(G_EA + 2 + k))
    r_, c4, X = t0, t1, t2
    p.valu(f"v_lshrrev_b32 v{r_}, 2, v{m}", vr(m), vr(r_))
    p.valu(f"v_and_b32 v{c4}, 3, v{m}", vr(m), vr(c4))
    p.valu(f"v_and_b32 v{X}, 1, v{g}", vr(g), vr(X))
    p.valu(f"v_lshlrev_b32 v{X}, 2, v{X}", vr(X), vr(X))
    p.valu(f"v_and_b32 v{t3}, 2, v{r_}", vr(r_), vr(t3))
    p.valu(f"v_or_b32 v{X}, v{X}, v{t3}", vr(X) + vr(t3), vr(X))
    p.valu(f"v_lshrrev_b32 v{t3}, 1, v{c4}", vr(c4), vr(t3))
    p.valu(f"v_xor_b32 v{t3}, v{t3}, v{X}", vr(t3) + vr(X), vr(t3))
    p.valu(f"v_lshl_add_u32 v{r_}, v{g}, 3, v{r_}", vr(g) + vr(r_), vr(r_))
    p.valu(f"v_lshl_add_u32 v{r_}, v{r_}, 7, s{S_W4K}", vr(r_) + sr(S_W4K), vr(r_))
    p.valu(f"v_lshl_add_u32 v{r_}, v{t3}, 4, v{r_}", vr(t3) + vr(r_), vr(r_))
    p.valu(f"v_and_b32 v{c4}, 1, v{c4}", vr(c4), vr(c4))
    p.valu(f"v_lshl_add_u32 v{r_}, v{c4}, 3, v{r_}", vr(c4) + vr(r_), vr(r_))
    TB = (32768, WT0)
    for k in range(2):
        p.valu(f"v_add_u32 v{TA + 4 * k}, {TB[k]}, v{r_}", vr(r_), vr(TA + 4 * k))
        for nb in range(1, 4):
            p.valu(f"v_xor_b32 v{TA + 4 * k + nb}, {32 * nb}, v{TA + 4 * k}", vr(TA + 4 * k), vr(TA + 4 * k + nb))
    p.salu(f"s_add_u32 s{S_T0}, s{S_W4K}, {WPO}", sr(S_W4K), sr(S_T0))
    p.valu(f"v_lshl_add_u32 v{G_WV}, v0, 4, s{S_T0}", ["v0"] + sr(S_T0), vr(G_WV))
    fl = Flags(p, "g", G_PUB, G_ONE, G_FRD, G_FV)
    fl.setup(t0)
    srd(p, SRD_B, S_DBG, 256)
    st.at(109)

    LS = [(NL - 2) % 3, (NL - 1) % 3, NL % 3, 3, 4]

    def wf(vi, nb=0):
        sl = vi % 3 if vi < NL else LS[(vi - NL + 2) % NWR]
        return G_WF + 16 * sl + 4 * nb

    def tr_one(k, dst, nb, q):
        p.wait(vm=wtok[k])
        d = dst + 4 * nb + 2 * q
        kb = 1 if wreg(k) >= WT0 else 0
        a, off = TA + 4 * kb + nb, wreg(k) - TB[kb]
        rtok[k] = p.ds(f"ds_read_b64_tr_b16 {V(d, 2)}, v{a} offset:{off + 512 * q}", vr(a), vr(d, 2))

    def tr_read(k, dst):
        for nb in range(4):
            for q in range(2):
                tr_one(k, dst, nb, q)

    tr_read(-1, PR)
    fl.publish(F_WF)
    st.at(118)
    for nb in range(4):
        off = f" offset:{1024 * nb}" if nb else ""
        p.vmem(f"buffer_store_dwordx4 {V(PR + 4 * nb, 4)}, v{G_WV}, {S(SRD_C, 4)}, s{S_T1} offen{off} sc1",
               vr(PR + 4 * nb, 4) + vr(G_WV) + sr(S_T1), [], stdata=vr(PR + 4 * nb, 4))
    ptok = p.vm_issued - 1
    st.at(110)
    tr_read(0, wf(0))
    tr_read(1, wf(1))
    wdma(2)
    wdma(3)
    st.at(113)

    def signal():
        p.valu(f"v_mov_b32 v{G_T0}, {FLG + F_GD}", [], vr(G_T0))
        p.valu(f"v_mov_b32 v{G_T2}, s2", [], vr(G_T2))
        p.wait(vm=ptok)
        p.salu("s_mov_b64 exec, 1", [], ["exec"])
        p.ds(f"ds_add_rtn_u32 v{G_T1}, v{G_T0}, v{G_ONE}", vr(G_T0) + vr(G_ONE), vr(G_T1))
        p.valu(f"v_cmpx_eq_u32 3, v{G_T1}", vr(G_T1), ["exec", "vcc"])
        p.vmem(f"buffer_store_byte v{G_ONE}, v{G_T2}, {S(SRD_B, 4)}, 0 offen sc1", vr(G_ONE) + vr(G_T2) + ["exec"], [])
        p.salu("s_mov_b64 exec, -1", [], ["exec"])
        p.valu(f"v_lshlrev_b32 v{G_T0}, 2, v0", ["v0"], vr(G_T0))
        st.at(111)

    FT = P.FT
    NTP = (NF - FT) // 2
    JR = P.JR if FT == NF else 0
    vs = [(x, x >> 1, [(mb, mb) for mb in range(8)]) for x in range(2 * FT - JR)]
    for ph, mb0 in enumerate((4, 0)):
        for x in range(2 * FT, NX):
            t, e = divmod((x >> 1) - FT, 2)
            vs.append((x, FT + ph * NTP + t, [(mb0 + k, 4 * e + k) for k in range(4)]))
        for x in range(NX - JR, NX):
            vs.append((x, x >> 1, [(mb0 + k, mb0 + k) for k in range(4)]))
    frags = [(vi, x, mb, it, pos) for vi, (x, it, mbs) in enumerate(vs) for mb, pos in mbs]
    NFR = len(frags)
    first_rd, last_rd = {}, {}
    vstart = {}
    for i, fr in enumerate(frags):
        first_rd.setdefault(fr[3], i)
        last_rd[fr[3]] = i
        vstart.setdefault(fr[0], i)
    P2 = NX
    J = len(vs) - P2

    def ef(i):
        return G_EF + 4 * (i % 8)

    def rd_e(i):
        vi, x, mb, it, pos = frags[i]
        off = ESLOT(it) + 2048 * pos
        a = G_EA + (x & 1) + (2 if off >= 65536 else 0)
        p.ds(f"ds_read_b128 {V(ef(i), 4)}, v{a} offset:{off & 0xffff}", vr(a), vr(ef(i), 4))

    def ld_w(vi, nb):
        if nb == 0:
            p.salu(f"s_add_u32 s{S_SOFF}, s{S_WB}, {16384 * vs[vi][0]}", sr(S_WB), sr(S_SOFF))
        off = f" offset:{1024 * nb}" if nb else ""
        if P.do_wld:
            p.vmem(f"buffer_load_dwordx4 {V(wf(vi, nb), 4)}, v{G_WV}, {S(SRD_C, 4)}, s{S_SOFF} offen{off}{P.wsc}",
                   vr(G_WV) + sr(S_SOFF), vr(wf(vi, nb), 4))

    XV = G_T1
    stok = []

    def send(k):
        so = f"s{S_C3200 + (k >> 2) - 1}" if k >= 4 else "0"
        off = f" offset:{1024 * (k & 3)}" if k & 3 else ""
        a = G_ACC + 64 + 4 * k
        stok.append(p.vmem(f"buffer_store_dwordx4 {V(a, 4)}, v{XV}, {S(SRD_C, 4)}, {so} offen{off} sc1",
                           vr(a, 4) + vr(XV), [], stdata=vr(a, 4)))

    def xsetup():
        for k in range(3):
            p.salu(f"s_mov_b32 s{S_C3200 + k}, {4096 * (k + 1)}", [], sr(S_C3200 + k))
        p.salu(f"s_lshl_b32 s{S_T0}, s2, 2", [], sr(S_T0))
        p.salu(f"s_add_u32 s{S_T0}, s{S_T0}, s{S_WAVE}", sr(S_T0) + sr(S_WAVE), sr(S_T0))
        p.salu(f"s_xor_b32 s{S_T1}, s{S_T0}, 32", sr(S_T0), sr(S_T1))
        p.salu(f"s_lshl_b32 s{S_T2}, s{S_T0}, 14", sr(S_T0), sr(S_T2))
        p.valu(f"v_lshl_add_u32 v{XV}, v0, 4, s{S_T2}", ["v0"] + sr(S_T2), vr(XV))
        p.salu(f"s_lshl_b32 s{S_T2}, s{S_T1}, 8", sr(S_T1), sr(S_T2))
        p.salu(f"s_add_u32 s{S_T2}, s{S_T2}, {XFLG}", sr(S_T2), sr(S_T2))
        p.valu(f"v_mov_b32 v{G_T2}, s{S_T2}", sr(S_T2), vr(G_T2))
        p.salu(f"s_lshl_b32 s{S_T2}, s{S_T0}, 8", sr(S_T0), sr(S_T2))
        p.salu(f"s_add_u32 s{S_T2}, s{S_T2}, {XFLG}", sr(S_T2), sr(S_T2))
        p.valu(f"v_mov_b32 v{G_T0}, s{S_T2}", sr(S_T2), vr(G_T0))

    def xflag():
        p.wait(vm=stok[-1])
        p.salu("s_mov_b64 exec, 1", [], ["exec"])
        p.vmem(f"buffer_store_dword v{G_ONE}, v{G_T2}, {S(SRD_C, 4)}, 0 offen sc1", vr(G_ONE) + vr(G_T2), [])
        p.salu("s_mov_b64 exec, -1", [], ["exec"])
        p.salu(f"s_lshl_b32 s{S_T2}, s{S_T1}, 14", sr(S_T1), sr(S_T2))
        p.valu(f"v_lshl_add_u32 v{XV}, v0, 4, s{S_T2}", ["v0"] + sr(S_T2), vr(XV))
        st.at(101)

    RX = G_ACC + 64

    def xrecv():
        st.val(126, S_CNT)
        p.salu(f"s_mov_b32 s{S_CNT}, {P.spin}", [], sr(S_CNT))
        p.label("L_gx2")
        p.raw(f"    buffer_load_dword v{G_T2}, v{G_T0}, {S(SRD_C, 4)}, 0 offen sc1")
        p.raw("    s_waitcnt vmcnt(0)")
        p.raw(f"    v_readfirstlane_b32 s{S_T2}, v{G_T2}")
        p.raw(f"    s_cmp_lg_u32 s{S_T2}, 0")
        p.raw("    s_cbranch_scc1 L_gx3")
        p.raw(f"    s_sub_u32 s{S_CNT}, s{S_CNT}, 1")
        p.raw("    s_cbranch_scc0 L_gx2")
        p.label("L_gx3")
        p.vm_done = p.vm_issued
        st.at(102)
        for k in range(16):
            so = f"s{S_C3200 + (k >> 2) - 1}" if k >= 4 else "0"
            off = f" offset:{1024 * (k & 3)}" if k & 3 else ""
            p.vmem(f"buffer_load_dwordx4 {V(RX + 4 * k, 4)}, v{XV}, {S(SRD_C, 4)}, {so} offen{off} sc1",
                   vr(XV), vr(RX + 4 * k, 4))

    def go_issue():
        p.salu(f"s_cmp_lg_u32 s{S_WAVE}, 0", sr(S_WAVE), [])
        p.raw("    s_cbranch_scc1 L_gg0")
        p.raw(f"    buffer_load_dword v{G_T1}, v{G_T0}, {S(SRD_B, 4)}, 0 offen sc1")
        p.label("L_gg0")

    def go_check():
        p.salu(f"s_cmp_lg_u32 s{S_WAVE}, 0", sr(S_WAVE), [])
        p.raw("    s_cbranch_scc1 L_gg3")
        p.raw(f"    s_mov_b32 s{S_T0}, {P.spin}")
        p.label("L_gg1")
        p.raw("    s_waitcnt vmcnt(0)")
        p.raw(f"    v_cmp_ne_u32 vcc, 0x01010101, v{G_T1}")
        p.raw(f"    s_sub_u32 s{S_T0}, s{S_T0}, 1")
        p.raw("    s_cbranch_scc1 L_gg2")
        p.raw("    s_cbranch_vccz L_gg2")
        p.raw(f"    buffer_load_dword v{G_T1}, v{G_T0}, {S(SRD_B, 4)}, 0 offen sc1")
        p.raw("    s_branch L_gg1")
        p.label("L_gg2")
        p.raw(f"    ds_write_b32 v{G_FRD}, v{G_ONE} offset:{F_GO}")
        p.raw("    s_waitcnt lgkmcnt(0)")
        p.label("L_gg3")
        p.wait_all(vm=False)
        fl.wait(F_GO, 1, G_T2)
        st.at(112)

    ev = {}

    def at(slot, fn):
        ev.setdefault(max(slot, 0), []).append(fn)

    for i in range(8, NFR):
        s = 4 * (i - 8) + 4
        f = frags[i][3]
        if first_rd[f] == i:
            at(s - 2 - P.flr, lambda: fl.read(F_LAND))
            at(s - 2, lambda f=f: fl.cmp(f + 1))
            at(s - 1, fl.branch)
        at(s, lambda i=i: rd_e(i))
        if last_rd[f] == i and f < NF - NE:
            at(s, lambda: fl.publish(F_CONS))
    at(4 * vstart[CS], go_check)
    at(9, lambda: fl.wait(F_RS, 3, G_T2))
    for k in range(2, NL):
        s = 4 * vstart[k - 2]
        for j in range(8):
            at(s + 1 + P.trs + j, lambda k=k, j=j: tr_one(k, wf(k), j >> 1, j & 1))
        if k == NL - 3:
            at(s + 8 + P.trs, lambda: fl.publish(F_WF))
        if k >= 4:
            at(4 * vstart[max(k - 5, 0)] + (10 if k != 5 else 14), lambda k=k: wdma(k))
    for vi in range(NL, len(vs)):
        v0_ = max(vi - (NWR - 1), CS)
        s = 4 * vstart[v0_] + (1 + 8 * (vi - NL) if v0_ == CS else 1)
        for nb in range(4):
            at(s + 2 * nb, lambda vi=vi, nb=nb: ld_w(vi, nb))
    at(4 * vstart[CS - 1] + 12, go_issue)
    if P.sg >= 0:
        at(P.sg, signal)
    if P.do_xchg:
        s = 4 * vstart[P2]
        at(s - 8, xsetup)
        at(s, lambda: p.salu(f"s_setprio {P.prio_gs}"))
        for k in range(16):
            at(4 * vstart[P2 + k // P.sps] + 8 + (k % P.sps) * (8 // P.sps), lambda k=k: send(k))
        at(4 * vstart[P2 + P.xf], xflag)
        if P.xp < J:
            at(4 * vstart[P2 + P.xp], xrecv)
    BT = wf(len(vs) - 5)
    G_B1, G_W2 = wf(len(vs) - 4), wf(len(vs) - 3)

    def ld_bias():
        tt = G_T2
        assert P.xf < J - 4
        p.valu(f"v_lshrrev_b32 v{tt}, 4, v0", ["v0"], vr(tt))
        p.salu(f"s_lshl_b32 s{S_T2}, s{S_WAVE}, 7", sr(S_WAVE), sr(S_T2))
        p.valu(f"v_lshl_add_u32 v{tt}, v{tt}, 3, s{S_T2}", vr(tt) + sr(S_T2), vr(tt))
        for k, base in enumerate((S_B1, S_W2)):
            srd(p, SRD_A + 4 * k, base, H * 2)
            for nb in range(4):
                d = BT + 8 * k + 2 * nb
                p.vmem(f"buffer_load_dwordx2 {V(d, 2)}, v{tt}, {S(SRD_A + 4 * k, 4)}, 0 offen offset:{32 * nb}", vr(tt), vr(d, 2))
    at(4 * vstart[len(vs) - 4] + 1, ld_bias)

    if P.sg < 0:
        signal()
    p.salu(f"s_setprio {P.prio_g}")
    fl.wait(F_LAND, 1)
    for i in range(8):
        rd_e(i)
    for i, (vi, x, mb, it, pos) in enumerate(frags):
        if vstart[vi] == i:
            p.comment(f"---- G virtual step {vi} (x={x})")
            if vi % P.stev == 0 and vi <= 100:
                st.at(vi)
        for nb in range(4):
            for fn in ev.pop(4 * i + nb, []):
                fn()
            if P.do_gemm or x == 0:
                p.mfma16(acc(mb, nb), wf(vi, nb), ef(i), acc(mb, nb) if x else None)
    assert not ev, sorted(ev)

    st.at(105)
    if P.do_xchg and P.xp >= J:
        xrecv()
    t0, t1, t2, m, g, G_B2, G_C2 = (wf(len(vs) - 2) + k for k in range(7))
    srd(p, SRD_A, S_B2, 2)
    p.valu(f"v_mov_b32 v{t0}, 0", [], vr(t0))
    p.vmem(f"buffer_load_ushort v{G_B2}, v{t0}, {S(SRD_A, 4)}, 0 offen", vr(t0), vr(G_B2))
    for k, dst in enumerate((G_B1, G_W2)):
        for q in range(8):
            s = BT + 8 * k + q
            p.valu(f"v_lshlrev_b32 v{dst + 2 * q}, 16, v{s}", vr(s), vr(dst + 2 * q))
            p.valu(f"v_and_b32 v{dst + 2 * q + 1}, 0xffff0000, v{s}", vr(s), vr(dst + 2 * q + 1))
    c1 = -2.0 * math.log2(math.e) * math.sqrt(2.0 / math.pi)
    c2 = c1 * 0.044715
    p.valu(f"v_mov_b32 v{G_C2}, 0x{f32bits(c2):08x}", [], vr(G_C2))
    p.valu(f"v_and_b32 v{m}, 15, v0", ["v0"], vr(m))
    p.valu(f"v_lshrrev_b32 v{g}, 4, v0", ["v0"], vr(g))
    for mb in range(4):
        for nb in range(4):
            a = acc(mb, nb)
            for r in range(4):
                p.valu(f"v_add_f32 v{a + r}, v{a + r}, v{G_B1 + 4 * nb + r}", vr(a + r) + vr(G_B1 + 4 * nb + r), vr(a + r))
    PS = G_EF + 16
    TT = G_EF
    for mb in range(4):
        for nb in range(4):
            a = acc(mb, nb)
            rx = RX + 4 * (mb * 4 + nb)
            X_ = [a + r for r in range(4)]
            T_ = [TT + 8 * (nb & 1) + r for r in range(4)]
            E_ = [x + 4 for x in T_]
            if P.do_xchg:
                for r in range(4):
                    p.valu(f"v_add_f32 v{X_[r]}, v{X_[r]}, v{rx + r}", vr(X_[r]) + vr(rx + r), vr(X_[r]))
            for r in range(4):
                p.valu(f"v_mul_f32 v{T_[r]}, v{X_[r]}, v{X_[r]}", vr(X_[r]), vr(T_[r]))
            for r in range(4):
                p.valu(f"v_fmaak_f32 v{T_[r]}, v{T_[r]}, v{G_C2}, 0x{f32bits(c1):08x}", vr(T_[r]) + vr(G_C2), vr(T_[r]))
            for r in range(4):
                p.valu(f"v_mul_f32 v{T_[r]}, v{T_[r]}, v{X_[r]}", vr(T_[r]) + vr(X_[r]), vr(T_[r]))
            for r in range(4):
                p.valu(f"v_exp_f32 v{E_[r]}, v{T_[r]}", vr(T_[r]), vr(E_[r]), kind="trans")
            for r in range(4):
                p.valu(f"v_mul_f32 v{X_[r]}, v{X_[r]}, v{G_W2 + 4 * nb + r}", vr(X_[r]) + vr(G_W2 + 4 * nb + r), vr(X_[r]))
            for r in range(4):
                p.valu(f"v_add_f32 v{E_[r]}, 1.0, v{E_[r]}", vr(E_[r]), vr(E_[r]))
            for r in range(4):
                p.valu(f"v_rcp_f32 v{E_[r]}, v{E_[r]}", vr(E_[r]), vr(E_[r]), kind="trans")
            for r in range(4):
                if nb == 0 and r == 0:
                    p.valu(f"v_mul_f32 v{PS + mb}, v{X_[r]}, v{E_[r]}", vr(X_[r]) + vr(E_[r]), vr(PS + mb))
                else:
                    p.valu(f"v_fmac_f32 v{PS + mb}, v{X_[r]}, v{E_[r]}", vr(X_[r]) + vr(E_[r]) + vr(PS + mb), vr(PS + mb))
    for k in range(2):
        a, b = PS + 2 * k, PS + 2 * k + 1
        p.valu(f"v_permlane32_swap_b32 v{a}, v{b}", vr(a) + vr(b), vr(a) + vr(b), kind="perm")
    for k in range(2):
        a, b = PS + 2 * k, PS + 2 * k + 1
        p.valu(f"v_add_f32 v{a}, v{a}, v{b}", vr(a) + vr(b), vr(a))
    a, b = PS, PS + 2
    p.valu(f"v_permlane16_swap_b32 v{a}, v{b}", vr(a) + vr(b), vr(a) + vr(b), kind="perm")
    p.valu(f"v_add_f32 v{a}, v{a}, v{b}", vr(a) + vr(b), vr(a))
    p.valu(f"v_and_b32 v{t0}, 1, v{g}", vr(g), vr(t0))
    p.valu(f"v_lshrrev_b32 v{t1}, 1, v{g}", vr(g), vr(t1))
    p.valu(f"v_lshl_or_b32 v{t0}, v{t0}, 1, v{t1}", vr(t0) + vr(t1), vr(t0))
    p.valu(f"v_lshl_or_b32 v{t0}, v{t0}, 4, v{m}", vr(t0) + vr(m), vr(t0))
    p.salu(f"s_lshl_b32 s{S_T2}, s{S_WAVE}, 8", sr(S_WAVE), sr(S_T2))
    p.salu(f"s_add_u32 s{S_T2}, s{S_T2}, {RED}", sr(S_T2), sr(S_T2))
    p.valu(f"v_lshl_add_u32 v{t0}, v{t0}, 2, s{S_T2}", vr(t0) + sr(S_T2), vr(t0))
    p.ds(f"ds_write_b32 v{t0}, v{PS}", vr(t0) + vr(PS), [])
    st.at(103)
    p.wait_all()
    p.barrier()
    st.at(104)
    p.salu(f"s_cmp_lg_u32 s{S_WAVE}, 0", sr(S_WAVE), [])
    p.raw("    s_cbranch_scc1 L_gdone")
    p.valu(f"v_lshlrev_b32 v{t0}, 2, v0", ["v0"], vr(t0))
    p.valu(f"v_add_u32 v{t0}, {RED}, v{t0}", vr(t0), vr(t0))
    Q = wf(len(vs) - 1)
    for k in range(5):
        p.ds(f"ds_read_b32 v{Q + k}, v{t0} offset:{256 * k}", vr(t0), vr(Q + k))
    srd(p, SRD_A, S_OUT, B * 2)
    p.salu(f"s_lshl_b32 s{S_T2}, s{S_HK}, 6", sr(S_HK), sr(S_T2))
    p.salu(f"s_add_u32 s{S_T2}, s{S_T2}, s{S_SB}", sr(S_T2) + sr(S_SB), sr(S_T2))
    p.salu(f"s_lshl_b32 s{S_T2}, s{S_T2}, 1", sr(S_T2), sr(S_T2))
    p.valu(f"v_lshl_add_u32 v{t1}, v0, 1, s{S_T2}", ["v0"] + sr(S_T2), vr(t1))
    for a, b in ((0, 1), (2, 3), (0, 2)):
        p.valu(f"v_add_f32 v{Q + a}, v{Q + a}, v{Q + b}", vr(Q + a) + vr(Q + b), vr(Q + a))
    p.valu(f"v_cvt_pk_bf16_f32 v{Q}, v{Q}, v{Q + 4}", vr(Q) + vr(Q + 4), vr(Q))
    p.valu(f"v_lshlrev_b32 v{Q + 1}, 16, v{Q}", vr(Q), vr(Q + 1))
    p.valu(f"v_and_b32 v{Q + 2}, 0xffff0000, v{Q}", vr(Q), vr(Q + 2))
    p.valu(f"v_lshlrev_b32 v{G_B2}, 16, v{G_B2}", vr(G_B2), vr(G_B2))
    p.valu(f"v_add_f32 v{Q + 1}, v{Q + 1}, v{G_B2}", vr(Q + 1) + vr(G_B2), vr(Q + 1))
    p.valu(f"v_cvt_pk_bf16_f32 v{Q + 1}, v{Q + 1}, v{Q + 1}", vr(Q + 1), vr(Q + 1))
    p.valu(f"v_lshlrev_b32 v{Q + 1}, 16, v{Q + 1}", vr(Q + 1), vr(Q + 1))
    p.valu(f"v_add_f32 v{Q + 1}, v{Q + 1}, v{Q + 2}", vr(Q + 1) + vr(Q + 2), vr(Q + 1))
    p.valu(f"v_cvt_pk_bf16_f32 v{Q + 1}, v{Q + 1}, v{Q + 1}", vr(Q + 1), vr(Q + 1))
    p.vmem(f"buffer_store_short v{Q + 1}, v{t1}, {S(SRD_A, 4)}, 0 offen", vr(Q + 1) + vr(t1), [])
    p.label("L_gdone")
    p.nop(2)
    st.dump(0, t2)
    p.raw("    s_endpgm")
    fl.emit_slow()

R_CH = 2
R_SEL, R_WL = 4, 5
R_T = 6
R_GR = 7
R_GIO = 11
R_EA = 12
R_EI = 16
R_GI = 48
R_ACC = 80
R_WB = 96
R_PS = 108
R_RED = 112
R_EIO = 114
R_PUB, R_ONE, R_FRD, R_FV = 116, 117, 118, 119
R_WREG = 120
R_STAMP = 172
R_POOL = 176
NPOOL = 10


def rwave(p):
    p.label("L_rwave")
    p.reset_state()
    p.nop(2)
    if P.prio_r:
        p.salu(f"s_setprio {P.prio_r}")
    t0 = R_T
    st = Stamper(p, R_STAMP)
    st.at(120)
    st.at(121, True)
    q, c, m, g = R_ACC, R_ACC + 1, R_ACC + 2, R_ACC + 3
    t1, t2, t3, a66 = R_ACC + 4, R_ACC + 5, R_ACC + 6, R_ACC + 7
    a1, a2, a3, aw = R_ACC + 8, R_ACC + 9, R_ACC + 10, R_ACC + 11
    eio = R_EIO
    srd(p, SRD_B, S_IDX, B * F * 4)
    p.valu(f"v_lshrrev_b32 v{q}, 3, v0", ["v0"], vr(q))
    p.valu(f"v_and_b32 v{c}, 7, v0", ["v0"], vr(c))
    for k in range(3):
        p.salu(f"s_mov_b32 s{S_C3200 + k}, {3200 * (k + 1)}", [], sr(S_C3200 + k))
    S_C400 = S_C3200 + 3
    p.salu(f"s_mov_b32 s{S_C400}, 400", [], sr(S_C400))
    p.salu(f"s_lshl_b32 s{S_T0}, s{S_WAVE}, 5", sr(S_WAVE), sr(S_T0))
    p.salu(f"s_lshl_b32 s{S_T1}, s{S_HK}, 6", sr(S_HK), sr(S_T1))
    p.salu(f"s_xor_b32 s{S_T0}, s{S_T0}, s{S_T1}", sr(S_T0) + sr(S_T1), sr(S_T0))
    p.salu(f"s_add_u32 s{S_T0}, s{S_T0}, s{S_SB}", sr(S_T0) + sr(S_SB), sr(S_T0))
    p.salu(f"s_mul_i32 s{S_T3}, s{S_HK}, 200", sr(S_HK), sr(S_T3))
    p.valu(f"v_add_u32 v{t1}, s{S_T0}, v{q}", vr(q) + sr(S_T0), vr(t1))
    p.valu(f"v_mul_u32_u24 v{t1}, 400, v{t1}", vr(t1), vr(t1))
    p.valu(f"v_lshl_add_u32 v{eio}, v{c}, 4, v{t1}", vr(c) + vr(t1), vr(eio))
    p.valu(f"v_add_u32 v{eio}, s{S_T3}, v{eio}", vr(eio) + sr(S_T3), vr(eio))

    FT = P.FT
    NTP = (NF - FT) // 2
    assert FT == NF or (34 <= FT <= 40 and not FT & 1)
    WIDE = FT == NF
    EIA = R_EI + 28

    def ei(G, j, comp=0):
        return R_EI + 16 * G + 4 * j + comp if G == 0 or WIDE else R_EI + 12 + 4 * G + j

    def load_ei(G):
        for j in range(4):
            so = "0" if j == 0 else f"s{S_C3200 + j - 1}"
            if G == 0 or WIDE:
                p.vmem(f"buffer_load_dwordx4 {V(ei(G, j), 4)}, v{eio}, {S(SRD_B, 4)}, {so} offen offset:{128 * G}",
                       vr(eio), vr(ei(G, j), 4))
            else:
                a = EIA + G - 1
                p.vmem(f"buffer_load_dword v{ei(G, j)}, v{a}, {S(SRD_B, 4)}, {so} offen", vr(a), vr(ei(G, j)))

    def shift_ei(G):
        for j in range(4):
            for k in range(4 if G == 0 or WIDE else 1):
                r = ei(G, j, k)
                p.valu(f"v_lshlrev_b32 v{r}, 7, v{r}", vr(r), vr(r))

    load_ei(0)
    p.barrier()
    if not WIDE:
        p.valu(f"v_mul_u32_u24 v{t2}, 12, v{c}", vr(c), vr(t2))
        p.valu(f"v_sub_u32 v{EIA}, v{eio}, v{t2}", vr(eio) + vr(t2), vr(EIA))
        p.valu(f"v_add_u32 v{EIA}, 128, v{EIA}", vr(EIA), vr(EIA))
        p.salu(f"s_and_b32 s{S_T0}, s{S_WAVE}, 1", sr(S_WAVE), sr(S_T0))
        p.salu(f"s_lshl_b32 s{S_T0}, s{S_T0}, 5", sr(S_T0), sr(S_T0))
        p.salu(f"s_add_u32 s{S_T0}, s{S_T0}, s{S_SB}", sr(S_T0) + sr(S_SB), sr(S_T0))
        p.salu(f"s_add_u32 s{S_T0}, s{S_T0}, s{S_T1}", sr(S_T0) + sr(S_T1), sr(S_T0))
        p.salu(f"s_lshr_b32 s{S_T2}, s{S_WAVE}, 1", sr(S_WAVE), sr(S_T2))
        p.salu(f"s_lshl_b32 s{S_T2}, s{S_T2}, 2", sr(S_T2), sr(S_T2))
        p.salu(f"s_add_u32 s{S_T2}, s{S_T2}, s{S_T3}", sr(S_T2) + sr(S_T3), sr(S_T2))
        p.salu(f"s_add_u32 s{S_T2}, s{S_T2}, {4 * FT}", sr(S_T2), sr(S_T2))
        p.valu(f"v_lshl_add_u32 v{t2}, v{c}, 3, s{S_T2}", vr(c) + sr(S_T2), vr(t2))
        for k in (1, 0):
            p.valu(f"v_add_u32 v{t1}, s{S_T0}, v{q}", vr(q) + sr(S_T0), vr(t1))
            p.valu(f"v_mad_u32_u24 v{EIA + 1 + k}, v{t1}, s{S_C400}, v{t2}", vr(t1) + vr(t2) + sr(S_C400), vr(EIA + 1 + k))
            p.salu(f"s_xor_b32 s{S_T0}, s{S_T0}, 64", sr(S_T0), sr(S_T0))
    srd(p, SRD_W, S_WP, F * F * 2)
    p.salu(f"s_mul_i32 s{S_T3}, s{S_WAVE}, 5120", sr(S_WAVE), sr(S_T3))
    p.valu(f"v_lshl_add_u32 v{R_T}, v0, 4, s{S_T3}", ["v0"] + sr(S_T3), vr(R_T))

    def raw_dma():
        p.salu(f"s_add_u32 m0, s{S_T3}, {RAW}", sr(S_T3), ["m0"])
        for k in range(4):
            off = f" offset:{1024 * k}" if k else ""
            p.vmem(f"buffer_load_dwordx4 v{R_T}, {S(SRD_W, 4)}, 0 offen{off} lds", vr(R_T) + ["m0"], [], kind="dma")
        p.salu(f"s_add_u32 m0, s{S_T3}, {RAW + 4096}", sr(S_T3), ["m0"])
        p.salu(f"s_mov_b32 s{S_SOFF}, 4096", [], sr(S_SOFF))
        return p.vmem(f"buffer_load_dwordx4 v{R_T}, {S(SRD_W, 4)}, s{S_SOFF} offen lds",
                      vr(R_T) + ["m0"] + sr(S_SOFF), [], kind="dma")
    p.salu(f"s_lshl_b32 s{S_T0}, s{S_WAVE}, 4", sr(S_WAVE), sr(S_T0))
    p.salu(f"s_add_u32 s{S_T0}, s{S_T0}, s{S_T1}", sr(S_T0) + sr(S_T1), sr(S_T0))
    p.salu(f"s_add_u32 s{S_T0}, s{S_T0}, s{S_SB}", sr(S_T0) + sr(S_SB), sr(S_T0))
    p.salu(f"s_mul_i32 s{S_T0}, s{S_T0}, 400", sr(S_T0), sr(S_T0))
    p.valu(f"v_lshl_add_u32 v{R_GIO}, v0, 2, s{S_T0}", ["v0"] + sr(S_T0), vr(R_GIO))

    def load_gi(s):
        for k in range(2):
            off = 400 * s + 256 * k
            so = "0"
            if off > 4000:
                off -= 3200
                so = f"s{S_C3200}"
            p.vmem(f"buffer_load_dword v{R_GI + 2 * s + k}, v{R_GIO}, {S(SRD_B, 4)}, {so} offen offset:{off}",
                   vr(R_GIO), vr(R_GI + 2 * s + k))

    raw_tok = raw_dma()
    load_gi(0)
    load_gi(1)
    etok = {}
    earot = [0]

    def gather(src, cc, par, m0base, m0off):
        a = R_EA + earot[0] % 4
        earot[0] += 1
        ch = R_CH + par
        p.salu(f"s_add_u32 m0, s{m0base}, {m0off}", sr(m0base), ["m0"])
        p.valu(f"v_or_b32_dpp v{a}, v{src}, v{ch} row_newbcast:{cc} row_mask:0xf bank_mask:0x3",
               vr(src) + vr(ch) + vr(a), vr(a), kind="dpp", dpp=vr(src))
        p.valu(f"v_or_b32_dpp v{a}, v{src}, v{ch} row_newbcast:{8 + cc} row_mask:0xf bank_mask:0xc",
               vr(src) + vr(ch) + vr(a), vr(a), kind="dpp", dpp=vr(src))
        return a

    def edma(f, j):
        if not P.do_edma:
            return
        if f < 32 or WIDE:
            src, cc = ei(f >> 5, j, f & 3), (f & 31) >> 2
        elif f < FT:
            src, cc = ei(1, j), f - 32
        else:
            ph, cc = divmod(f - FT, NTP)
            src = ei(2 + ph, j)
        a = gather(src, cc, j & 1, S_W4K, ESLOT(f) + 1024 * j)
        etok[f] = p.vmem(f"buffer_load_dwordx4 v{a}, {S(SRD_A, 4)}, 0 offen lds", vr(a) + ["m0"], [], kind="dma")

    srd(p, SRD_A, S_TAB, VOC * D * 2)
    p.valu(f"v_and_b32 v{m}, 15, v0", ["v0"], vr(m))
    p.valu(f"v_lshrrev_b32 v{g}, 4, v0", ["v0"], vr(g))
    p.valu(f"v_lshrrev_b32 v{t1}, 1, v{q}", vr(q), vr(t1))
    p.valu(f"v_xor_b32 v{t1}, v{t1}, v{c}", vr(t1) + vr(c), vr(t1))
    p.valu(f"v_lshlrev_b32 v{R_CH}, 4, v{t1}", vr(t1), vr(R_CH))
    p.valu(f"v_xor_b32 v{R_CH + 1}, 64, v{R_CH}", vr(R_CH), vr(R_CH + 1))
    for k in range(4):
        p.valu(f"v_mov_b32 v{R_EA + k}, 0", [], vr(R_EA + k))
    p.valu(f"v_lshl_add_u32 v{t1}, v{c}, 3, v{q}", vr(c) + vr(q), vr(t1))
    p.valu(f"v_lshlrev_b32 v{R_SEL}, 2, v{t1}", vr(t1), vr(R_SEL))
    p.valu(f"v_lshlrev_b32 v{R_WL}, 4, v0", ["v0"], vr(R_WL))
    p.valu(f"v_add_u32 v{R_WL}, {G0}, v{R_WL}", vr(R_WL), vr(R_WL))
    p.valu(f"v_cmp_gt_u32 {S(S_MI, 2)}, 4, v0", ["v0"], sr(S_MI, 2))
    p.salu(f"s_lshl_b32 s{S_STG}, s{S_WAVE}, 13", sr(S_WAVE), sr(S_STG))
    p.salu(f"s_add_u32 s{S_STG}, s{S_STG}, {GSTG}", sr(S_STG), sr(S_STG))
    for k, msk in ((0, 15), (2, 3)):
        p.valu(f"v_and_b32 v{t2}, {msk}, v{m}", vr(m), vr(t2))
        p.valu(f"v_lshrrev_b32 v{t1}, 1, v{t2}", vr(t2), vr(t1))
        p.valu(f"v_xor_b32 v{t1}, v{t1}, v{g}", vr(t1) + vr(g), vr(t1))
        p.valu(f"v_lshl_add_u32 v{t2}, v{t2}, 7, s{S_STG}", vr(t2) + sr(S_STG), vr(t2))
        p.valu(f"v_lshl_add_u32 v{R_GR + k}, v{t1}, 4, v{t2}", vr(t1) + vr(t2), vr(R_GR + k))
        p.valu(f"v_xor_b32 v{R_GR + k + 1}, 64, v{R_GR + k}", vr(R_GR + k), vr(R_GR + k + 1))
    p.valu(f"v_and_b32 v{t1}, 3, v0", ["v0"], vr(t1))
    p.valu(f"v_lshlrev_b32 v{t1}, 1, v{t1}", vr(t1), vr(t1))
    p.valu(f"v_add_u32 v{a66}, {RAW + 96 * 200 + 96 * 2}, v{t1}", vr(t1), vr(a66))
    fl = Flags(p, "r", R_PUB, R_ONE, R_FRD, R_FV)
    fl.setup(t1)
    p.valu(f"v_lshlrev_b32 v{t3}, 2, v{g}", vr(g), vr(t3))
    p.valu(f"v_add_u32 v{t3}, s{S_WAVE}, v{t3}", vr(t3) + sr(S_WAVE), vr(t3))
    p.valu(f"v_mul_u32_u24 v{t1}, 200, v{t3}", vr(t3), vr(t1))
    p.valu(f"v_lshl_add_u32 v{a1}, v{m}, 1, v{t1}", vr(m) + vr(t1), vr(a1))
    p.valu(f"v_add_u32 v{a1}, {RAW}, v{a1}", vr(a1), vr(a1))
    p.valu(f"v_min_u32 v{t2}, 3, v{m}", vr(m), vr(t2))
    p.valu(f"v_mul_u32_u24 v{t1}, 200, v{m}", vr(m), vr(t1))
    p.valu(f"v_lshl_add_u32 v{a2}, v{t3}, 1, v{t1}", vr(t3) + vr(t1), vr(a2))
    p.valu(f"v_add_u32 v{a2}, {RAW}, v{a2}", vr(a2), vr(a2))
    p.valu(f"v_mul_u32_u24 v{t1}, 200, v{t2}", vr(t2), vr(t1))
    p.valu(f"v_lshl_add_u32 v{a3}, v{t3}, 1, v{t1}", vr(t3) + vr(t1), vr(a3))
    p.valu(f"v_add_u32 v{a3}, {RAW}, v{a3}", vr(a3), vr(a3))
    p.salu(f"s_lshl_b32 s{S_T0}, s{S_WAVE}, 2", sr(S_WAVE), sr(S_T0))
    p.salu(f"s_add_u32 s{S_T0}, s{S_T0}, {G0}", sr(S_T0), sr(S_T0))
    p.valu(f"v_lshl_add_u32 v{aw}, v0, 4, s{S_T0}", ["v0"] + sr(S_T0), vr(aw))
    p.valu(f"v_cmp_gt_u32 {S(S_MJ, 2)}, 4, v{m}", vr(m), sr(S_MJ, 2))

    def wb_read():
        WR = R_POOL
        for n, (I, J) in enumerate(TILES[:27]):
            p.ds(f"ds_read_u16 v{WR + 2 * n}, v{a1} offset:{3200 * I + 32 * J}", vr(a1), vr(WR + 2 * n))
            if I != J:
                aa = a3 if J == 6 else a2
                p.ds(f"ds_read_u16 v{WR + 2 * n + 1}, v{aa} offset:{3200 * J + 32 * I}", vr(aa), vr(WR + 2 * n + 1))
        d = R_WREG + 48
        for r in range(4):
            p.ds(f"ds_read_u16 v{d + r}, v{a66} offset:{200 * r}", vr(a66), vr(d + r))
        for n, (I, J) in enumerate(TILES[:27]):
            x, y = WR + 2 * n, WR + 2 * n + 1
            p.valu(f"v_lshlrev_b32 v{x}, 16, v{x}", vr(x), vr(x))
            if I != J:
                p.valu(f"v_lshlrev_b32 v{y}, 16, v{y}", vr(y), vr(y))
                p.valu(f"v_add_f32 v{x}, v{x}, v{y}", vr(x) + vr(y), vr(x))
            if J == 6:
                p.valu(f"v_cndmask_b32 v{x}, 0, v{x}, {S(S_MJ, 2)}", vr(x) + sr(S_MJ, 2), vr(x))
        for r in range(4):
            p.valu(f"v_lshlrev_b32 v{d + r}, 16, v{d + r}", vr(d + r), vr(d + r))
            p.valu(f"v_cndmask_b32 v{d + r}, 0, v{d + r}, {S(S_MI, 2)}", vr(d + r) + sr(S_MI, 2), vr(d + r))

    def wb_write():
        for n in range(27):
            x = R_POOL + 2 * n
            p.ds(f"ds_write_b32 v{aw}, v{x} offset:{1024 * n}", vr(aw) + vr(x), [])

    def wb_fetch():
        for n in range(NLT, 27):
            d = R_WREG + 4 * (n - NLT)
            p.ds(f"ds_read_b128 {V(d, 4)}, v{R_WL} offset:{1024 * n}", vr(R_WL), vr(d, 4))

    def perm_gi(s):
        for k in range(2):
            r = R_GI + 2 * s + k
            p.valu(f"v_lshlrev_b32 v{r}, 7, v{r}", vr(r), vr(r))
            p.ds(f"ds_bpermute_b32 v{r}, v{R_SEL}, v{r}", vr(R_SEL) + vr(r), vr(r))

    tiles = []
    for s in range(16):
        for jj in range(7):
            for ii in range(jj + 1):
                tiles.append((s, ii, jj))
    NT = len(tiles)

    def tint(n):
        return P.ig0 + ((n + 8) * (NF - P.ig0)) // (NT + 8 - P.ntail)
    last_use = {}
    for n, (s, I, J) in enumerate(tiles):
        last_use[(s, I)] = n
        last_use[(s, J)] = n
    free = list(range(NPOOL))
    buf = {}
    peak = [0]
    gtok = {}
    rtok = {}

    def gdma(u):
        if u >= 112:
            return
        s, b = divmod(u, 7)
        if u - 4 in rtok:
            p.wait(lg=rtok[u - 4])
        for hh in range(2 if b < 6 else 1):
            j = 2 * b + hh
            a = gather(R_GI + 2 * s + (j >> 3), j & 7, hh, S_STG, 2048 * (u % 4) + 1024 * hh)
            if P.do_gload:
                if b == 6:
                    p.salu("s_mov_b32 exec_hi, 0", [], ["exec"])
                gtok[u] = p.vmem(f"buffer_load_dwordx4 v{a}, {S(SRD_A, 4)}, 0 offen lds", vr(a) + ["m0"], [], kind="dma")
                if b == 6:
                    p.salu("s_mov_b32 exec_hi, -1", [], ["exec"])
        if b == 3 and s + 1 < 16:
            perm_gi(s + 1)
        if b == 5 and s + 2 < 16:
            load_gi(s + 2)

    def gread(u):
        if u >= 112:
            return
        s, b = divmod(u, 7)
        assert free, f"operand pool exhausted at sample {s} block {b}"
        k = free.pop(0)
        peak[0] = max(peak[0], NPOOL - len(free))
        buf[(s, b)] = k
        d = R_POOL + 8 * k
        if u in gtok:
            p.wait(vm=gtok[u])
        for hh in range(2):
            a = R_GR + (2 if b == 6 else 0) + hh
            rtok[u] = p.ds(f"ds_read_b128 {V(d + 4 * hh, 4)}, v{a} offset:{2048 * (u % 4)}", vr(a), vr(d + 4 * hh, 4))

    def wreg(n):
        s, I, J = tiles[n]
        ti = TIDX[(I, J)]
        return R_WB + 4 * (n % 3) if ti < NLT else R_WREG + 4 * (ti - NLT)

    def wread(n):
        s, I, J = tiles[n]
        ti = TIDX[(I, J)]
        if ti < NLT:
            d = wreg(n)
            p.ds(f"ds_read_b128 {V(d, 4)}, v{R_WL} offset:{1024 * ti}", vr(R_WL), vr(d, 4))

    def tile_mfma(n):
        s, I, J = tiles[n]
        a = R_POOL + 8 * buf[(s, I)]
        b = R_POOL + 8 * buf[(s, J)]
        d = R_ACC + 4 * (n % 4)
        p.mfma16(d, a, b, None)
        p.mfma16(d, a + 4, b + 4, d)
        for key in {(s, I), (s, J)}:
            if last_use[key] == n:
                free.append(buf.pop(key))

    def tile_fma(n):
        if n < 0:
            return
        s, I, J = tiles[n]
        d = R_ACC + 4 * (n % 4)
        w = wreg(n)
        for r in range(4):
            if n % 28 == 0:
                p.valu(f"v_mul_f32 v{R_PS + r}, v{d + r}, v{w + r}", vr(d + r) + vr(w + r), vr(R_PS + r))
            else:
                p.valu(f"v_fmac_f32 v{R_PS + r}, v{d + r}, v{w + r}", vr(d + r) + vr(w + r) + vr(R_PS + r), vr(R_PS + r))
        if n % 28 == 27:
            x, y = R_RED, R_RED + 1
            p.valu(f"v_add_f32 v{x}, v{R_PS}, v{R_PS + 1}", vr(R_PS, 2), vr(x))
            p.valu(f"v_add_f32 v{y}, v{R_PS + 2}, v{R_PS + 3}", vr(R_PS + 2, 2), vr(y))
            p.valu(f"v_add_f32 v{x}, v{x}, v{y}", vr(x) + vr(y), vr(x))
            for ctl in ("row_shr:1 row_mask:0xf", "row_shr:2 row_mask:0xf", "row_shr:4 row_mask:0xf",
                        "row_shr:8 row_mask:0xf", "row_bcast:15 row_mask:0xa", "row_bcast:31 row_mask:0xc"):
                p.valu(f"v_add_f32_dpp v{x}, v{x}, v{x} {ctl} bank_mask:0xf", vr(x), vr(x), kind="dpp", dpp=vr(x))
            p.valu(f"v_readlane_b32 s{S_LP + s}, v{x}, 63", vr(x), sr(S_LP + s), kind="lane")

    def vtile(n):
        if (n + 8) % 4 == 0 and n + 8 >= 0:
            gread((n + 8) // 4)
        if (n + 8) % 4 == 1 and n + 8 >= 0:
            gdma((n + 8) // 4 + 4)
        if 0 <= n < NT:
            wread(n)
            tile_mfma(n)
            tile_fma(n - 2)

    def publish(f):
        p.wait(vm=etok.get(f))
        fl.publish(F_LAND)

    st.at(110)
    shift_ei(0)
    st.at(111)
    for f in range(2):
        for j in range(4):
            edma(f, j)
    if P.do_gram:
        perm_gi(0)
        for u in range(4):
            gdma(u)
    st.at(112)
    p.wait(vm=raw_tok)
    fl.publish(F_RS)
    fl.wait(F_RS, 1)
    wb_read()
    wb_write()
    fl.publish(F_RS)
    fl.wait(F_RS, 2)
    wb_fetch()
    fl.publish(F_RS)
    st.at(113)
    publish(0)
    st.at(114)

    def need(i):
        if i >= NF:
            return None
        if i == 2:
            return F_WF, 1
        if EPREV(i) is None:
            return (F_WF, 2) if i == I0() else None
        return F_CONS, EPREV(i) + 1

    fl.read(need(2)[0])
    n = -8
    npub = 1
    for i in range(2, NF + 1):
        p.comment(f"---- R interval {i}")
        if (2 * i) % P.stev == 0 and i < NF:
            st.at(2 * i)
        if need(i):
            fl.cmp(need(i)[1])
            p.nop(1)
            fl.branch()
        jobs = []
        if i < NF:
            jobs += [(lambda j=j: edma(i, j)) for j in range(4)]
        upto = i - (1 if i < I0() + 2 or i >= NF - 1 else P.plag)
        pubs = [(lambda f=f: publish(f)) for f in range(npub, upto + 1)]
        npub = max(npub, upto + 1)
        jobs = jobs[:2] + pubs + jobs[2:] if i >= I0() else jobs + pubs
        lds_ = (1,) if WIDE else (1, 2, 3)
        for G in lds_:
            if i == 14 + 2 * G:
                jobs += [lambda G=G: load_ei(G)]
            if i == 20 + 2 * G:
                jobs += [lambda G=G: shift_ei(G)]
        last = [lambda: fl.read(need(i + 1)[0])] if need(i + 1) else []
        slots = []
        if P.do_gram:
            while n < NT and (tint(n) == i or i == NF):
                slots.append(n)
                n += 1
        k = 0
        gap = max(1, len(slots) // max(len(jobs), 1)) if i < NF else 8
        for ks, sl in enumerate(slots):
            if ks % gap == (gap - 1 if i == NF else 0) and k < len(jobs):
                jobs[k]()
                k += 1
            if ks == len(slots) - 1:
                while k < len(jobs):
                    jobs[k]()
                    k += 1
                for fn in last:
                    fn()
                last = []
            vtile(sl)
        for fn in jobs[k:] + last:
            fn()
    assert npub == NF
    st.at(100)
    if P.do_gram:
        assert n == NT
        tile_fma(n - 2)
        tile_fma(n - 1)
    else:
        for s in range(16):
            p.salu(f"s_mov_b32 s{S_LP + s}, 0", [], sr(S_LP + s))
    x = R_RED
    p.valu(f"v_mov_b32 v{x}, 0", [], vr(x))
    for s in range(16):
        p.valu(f"v_writelane_b32 v{x}, s{S_LP + s}, {s}", sr(S_LP + s) + vr(x), vr(x), kind="lane")
    p.salu(f"s_lshl_b32 s{S_T0}, s{S_WAVE}, 6", sr(S_WAVE), sr(S_T0))
    p.salu(f"s_add_u32 s{S_T0}, s{S_T0}, {RED + 1024}", sr(S_T0), sr(S_T0))
    p.valu(f"v_lshl_add_u32 v{t0}, v0, 2, s{S_T0}", ["v0"] + sr(S_T0), vr(t0))
    p.salu("s_mov_b64 exec, 0xffff", [], ["exec"])
    p.ds(f"ds_write_b32 v{t0}, v{x}", vr(t0) + vr(x), [])
    p.salu("s_mov_b64 exec, -1", [], ["exec"])
    st.at(103)
    st.val(126, S_CNT)
    p.wait_all()
    p.barrier()
    st.dump(1, R_EA)
    p.label("L_end")
    p.raw("    s_endpgm")
    fl.emit_slow()
    print(f"R: pool peak {peak[0]}/{NPOOL}, max vm outstanding {p.max_vm_out}", file=sys.stderr)


HEADER = """; Kernarg layout (80 bytes, ptrs only, base s[0:1]):
; @launch grid=(256,1,1) block=(512,1,1) lds={lds}
.amdgcn_target "amdgcn-amd-amdhsa--gfx950"
.text
"""

KD = """.amdhsa_kernel {k}
  .amdhsa_next_free_vgpr {v}
  .amdhsa_next_free_sgpr {s}
  .amdhsa_accum_offset {a}
  .amdhsa_group_segment_fixed_size 0
  .amdhsa_kernarg_size 80
  .amdhsa_user_sgpr_count 2
  .amdhsa_user_sgpr_kernarg_segment_ptr 1
  .amdhsa_system_sgpr_workgroup_id_x 1
  .amdhsa_float_denorm_mode_32 3
.end_amdhsa_kernel
"""


def build():
    out = HEADER.format(name=NAME, lds=LDS_BYTES)
    k = f"{NAME}_kernel"
    p = Prog()
    p.raw(f".globl {k}\n.p2align 8\n.type {k},@function\n{k}:")
    common_prologue(p)
    gwave(p)
    rwave(p)
    out += p.text()
    out += '.section .rodata,"a"\n.p2align 6\n'
    out += KD.format(k=k, v=256, s=88, a=256)
    return out


if __name__ == "__main__":
    path = sys.argv[1] if len(sys.argv) > 1 else f"cdna_kernels/{NAME}.s"
    for kv in sys.argv[2:]:
        key, val = kv.split("=")
        setattr(P, key, eval(val))
    open(path, "w").write(build())
```
